```python
import torch

def _softmax(x, axis=-1):
    return torch.softmax(x, dim=axis)
def _gelu(x):
    return torch.nn.functional.gelu(x, approximate="tanh")
def _silu(x):
    return torch.nn.functional.silu(x)
def _sigmoid(x):
    return torch.sigmoid(x)
def _layernorm(x, axis=-1, eps=1e-5):
    m = x.mean(dim=axis, keepdim=True)
    v = x.var(dim=axis, keepdim=True, unbiased=False)
    return (x - m) / torch.sqrt(v + eps)
def _scatter_add(tgt, idx, src, axis=0):
    return tgt.clone().index_add_(axis, idx, src)
def _segment_sum(src, seg, n):
    out = torch.zeros((n,) + src.shape[1:], dtype=src.dtype)
    return out.index_add_(0, seg, src)
def _pad(x, pw):
    flat = tuple(v for pair in reversed(pw) for v in pair)
    return torch.nn.functional.pad(x, flat)

kernel_name = 'interleave_layers__mha_block__glu_gated_swiglu__prompt'

def setup_inputs():

    _w = (lambda a: (lambda t: t.to(torch.bfloat16) if t.is_floating_point() else t)(torch.as_tensor(a)))
    def _A_setup():
        B, S, D, H = 1, 2048, 448, 16
        return {
            "x": _w((lambda *s: torch.randn(*s, dtype=torch.bfloat16) * 0.05)(B, S, D)),
            "wqkv": _w((lambda *s: torch.randn(*s, dtype=torch.bfloat16) * 0.05)(D, 3 * D)),
            "wo": _w((lambda *s: torch.randn(*s, dtype=torch.bfloat16) * 0.05)(D, D)),
        }
    _A_in = _A_setup()

    def _B_setup():
        B, S, D, F = 1, 2048, 448, 1792
        return {
            "x": _w((lambda *s: torch.randn(*s, dtype=torch.bfloat16) * 0.05)(B, S, D)),
            "w1": _w((lambda *s: torch.randn(*s, dtype=torch.bfloat16) * 0.4)(D, F) * (2.0 / D) ** 0.5),
            "w3": _w((lambda *s: torch.randn(*s, dtype=torch.bfloat16) * 0.4)(D, F) * (2.0 / D) ** 0.5),
            "w2": _w((lambda *s: torch.randn(*s, dtype=torch.bfloat16) * 0.4)(F, D) * (2.0 / F) ** 0.5),
        }
    _B_in = _B_setup()

    return {
        "A_x": _A_in["x"],
        "A_wqkv": _A_in["wqkv"],
        "A_wo": _A_in["wo"],
        "B_x": _B_in["x"],
        "B_w1": _B_in["w1"],
        "B_w3": _B_in["w3"],
        "B_w2": _B_in["w2"],
    }

def reference(A_x, A_wqkv, A_wo, B_x, B_w1, B_w3, B_w2):
    def _A_ref(x, wqkv, wo):
        B, S, D = x.shape
        H = 16
        Dh = D // H
        qkv = (lambda x, *d: x.permute(*d))((x @ wqkv).reshape(B, S, 3, H, Dh), 2, 0, 3, 1, 4)
        q, k, v = qkv[0], qkv[1], qkv[2]
        scores = torch.einsum("bhqd,bhkd->bhqk", q, k) * (Dh ** -0.5)
        p = _softmax(scores, axis=-1)
        o = torch.einsum("bhqk,bhkd->bhqd", p, v)
        return (lambda x, *d: x.permute(*d))(o, 0, 2, 1, 3).reshape(B, S, D) @ wo

    def _B_ref(x, w1, w3, w2):
        gate = torch.einsum("bsd,df->bsf", x, w1)
        up = torch.einsum("bsd,df->bsf", x, w3)
        h = _silu(gate) * up
        out = torch.einsum("bsf,fd->bsd", h, w2)
        return out

    x = A_x
    x = x + _A_ref(_layernorm(x, axis=-1), A_wqkv, A_wo)
    x = x + _B_ref(_layernorm(x, axis=-1), B_w1, B_w3, B_w2)
    x = x + _A_ref(_layernorm(x, axis=-1), A_wqkv, A_wo)
    x = x + _B_ref(_layernorm(x, axis=-1), B_w1, B_w3, B_w2)
    return x
```

```python
import re

def V(n, cnt=1):
    return f"v{n}" if cnt == 1 else f"v[{n}:{n+cnt-1}]"
def A(n, cnt=1):
    return f"a{n}" if cnt == 1 else f"a[{n}:{n+cnt-1}]"
def S(n, cnt=1):
    return f"s{n}" if cnt == 1 else f"s[{n}:{n+cnt-1}]"

_REG_RE = re.compile(r'^(-|\|)?([vas])(\d+)\|?$')
_RNG_RE = re.compile(r'^(-|\|)?([vas])\[(\d+):(\d+)\]\|?$')

def regs_of(tok):
    tok = tok.strip()
    m = _REG_RE.match(tok)
    if m:
        return [m.group(2) + m.group(3)]
    m = _RNG_RE.match(tok)
    if m:
        return [m.group(2) + str(i) for i in range(int(m.group(3)), int(m.group(4)) + 1)]
    if tok in ('vcc', 'exec', 'm0', 'scc'):
        return [tok]
    return []

TRANS = ('v_exp_f32', 'v_log_f32', 'v_rcp_f32', 'v_rsq_f32', 'v_sqrt_f32', 'v_sin_f32', 'v_cos_f32')

class Ins:
    __slots__ = ('text', 'mn', 'defs', 'uses', 'kind', 'ops', 'cregs', 'passes', 'is_label', 'is_raw')
    def __init__(self, text):
        self.text = text
        self.is_label = False
        self.is_raw = False
        t = text.split(';')[0].strip()
        self.defs = []; self.uses = []; self.kind = 'other'; self.cregs = []; self.passes = 0
        if not t:
            self.is_raw = True; self.mn = ''; return
        if t.endswith(':'):
            self.is_label = True; self.mn = ''; return
        parts = t.split(None, 1)
        mn = parts[0]
        self.mn = mn
        ops = []
        if len(parts) > 1:
            rest = parts[1]
            ops = [o.strip() for o in rest.split(',')]
        self.ops = ops
        base = mn.replace('_e32', '').replace('_e64', '').replace('_dpp', '').replace('_sdwa', '')
        def opregs(i):
            if i >= len(ops): return []
            tok = ops[i].split()[0] if ops[i].split() else ''
            return regs_of(tok)
        allregs = lambda lo: [r for i in range(lo, len(ops)) for r in opregs(i)]
        if base.startswith('v_mfma') or base.startswith('v_smfmac'):
            self.kind = 'mfma'
            self.defs = opregs(0)
            self.uses = opregs(1) + opregs(2) + opregs(3)
            self.cregs = opregs(3)
            if '32x32x16' in base or '32x32x8' in base: self.passes = 8
            elif '16x16x32' in base or '16x16x16' in base: self.passes = 4
            else: self.passes = 16
        elif base.startswith('v_cmp'):
            self.kind = 'valu'
            self.defs = opregs(0) + (['exec'] if base.startswith('v_cmpx') else [])
            self.uses = allregs(1)
        elif base.startswith('v_'):
            self.kind = 'trans' if base in TRANS else 'valu'
            if base in ('v_add_co_u32', 'v_sub_co_u32', 'v_addc_co_u32', 'v_subb_co_u32', 'v_subrev_co_u32', 'v_mad_u64_u32'):
                self.defs = opregs(0) + opregs(1); self.uses = allregs(2)
            elif base.startswith('v_permlane') and 'swap' in base:
                self.defs = opregs(0) + opregs(1); self.uses = opregs(0) + opregs(1)
            elif base in ('v_fmac_f32', 'v_dot2c_f32_bf16', 'v_writelane_b32', 'v_fmac_f16'):
                self.defs = opregs(0); self.uses = opregs(0) + allregs(1)
            elif base == 'v_nop':
                pass
            else:
                self.defs = opregs(0); self.uses = allregs(1)
            if base == 'v_cndmask_b32' and len(ops) == 3:
                self.uses = self.uses + ['vcc']
            self.uses = self.uses + ['exec']
        elif base.startswith('ds_'):
            self.kind = 'ds'
            if base.startswith('ds_read') or base.startswith('ds_bpermute') or base.startswith('ds_swizzle') or base.startswith('ds_permute'):
                self.defs = opregs(0); self.uses = allregs(1)
            else:
                self.uses = allregs(0)
        elif base.startswith('buffer_') or base.startswith('global_') or base.startswith('flat_'):
            self.kind = 'vmem'
            if '_load' in base and ' lds' not in t:
                self.defs = opregs(0); self.uses = allregs(1)
            else:
                self.uses = allregs(0)
        elif base.startswith('s_'):
            self.kind = 'salu'
            if base in ('s_waitcnt', 's_barrier', 's_nop', 's_endpgm', 's_branch', 's_setprio', 's_sleep') or base.startswith('s_cbranch'):
                pass
            elif base.startswith('s_cmp'):
                self.uses = allregs(0); self.defs = ['scc']
            else:
                self.defs = opregs(0); self.uses = allregs(1)
    def waitstates(self):
        if self.is_label or self.is_raw: return 0
        if self.mn == 's_nop':
            return int(self.ops[0], 0) + 1
        return 1

def _overlap(a, b):
    return bool(set(a) & set(b))

def required(P, C):
    req = 0
    vdefP = [r for r in P.defs if r[0] in 'va']
    if P.kind in ('valu', 'trans'):
        if C.kind == 'mfma' and _overlap(vdefP, C.uses): req = max(req, 2)
        if P.kind == 'trans' and C.kind in ('valu',) and _overlap(vdefP, C.uses): req = max(req, 1)
        if C.mn.startswith('v_permlane') and _overlap(vdefP, C.uses): req = max(req, 2)
        if '_dpp' in C.mn or ' row_' in C.text or 'quad_perm' in C.text:
            if _overlap(vdefP, C.uses): req = max(req, 2)
        if C.mn.startswith('v_readfirstlane') or C.mn.startswith('v_readlane'):
            if _overlap(vdefP, C.uses): req = max(req, 1)
        sdef = [r for r in P.defs if r[0] == 's' or r == 'vcc']
        if sdef:
            if C.kind in ('valu', 'trans') and _overlap(sdef, C.uses): req = max(req, 2)
            if C.kind == 'vmem' and _overlap(sdef, C.uses): req = max(req, 5)
            if C.kind == 'mfma' and _overlap(sdef, C.uses): req = max(req, 2)
        if 'exec' in P.defs:
            if C.kind == 'mfma': req = max(req, 4)
            if C.kind in ('valu', 'trans'): req = max(req, 4)
    if P.kind == 'mfma':
        p = P.passes
        tbl_other = {2: 5, 4: 8, 8: 12, 16: 20}[p]
        tbl_cpart = {2: 4, 4: 6, 8: 10, 16: 18}[p]
        if C.kind == 'mfma':
            ab = C.uses[:len(C.uses) - len(C.cregs)]
            if _overlap(P.defs, ab): req = max(req, tbl_other)
            if _overlap(P.defs, C.cregs):
                if C.cregs == P.defs and C.passes == P.passes and p >= 4:
                    pass
                else:
                    req = max(req, tbl_cpart)
            elif _overlap(P.defs, C.defs):
                req = max(req, tbl_cpart)
        else:
            if _overlap(P.defs, C.uses) or _overlap(P.defs, C.defs): req = max(req, tbl_other)
            if C.kind in ('valu', 'trans') and _overlap(P.cregs, C.defs):
                req = max(req, {2: 1, 4: 3, 8: 7, 16: 15}[p])
    if P.kind == 'vmem' and ('store' in P.mn) and ('x3' in P.mn or 'x4' in P.mn):
        if _overlap(P.uses, C.defs) and C.kind in ('valu', 'trans', 'ds', 'vmem', 'mfma'):
            req = max(req, 2)
    if P.kind == 'salu' and 'm0' in P.defs and C.kind == 'vmem' and ' lds' in C.text:
        req = max(req, 1)
    return req

class Builder:
    def __init__(self):
        self.ins = []
    def __call__(self, text):
        for line in text.split('\n'):
            line = line.strip()
            if line:
                self.ins.append(Ins(line))
    def label(self, name):
        self.ins.append(Ins(name + ':'))
    def comment(self, c):
        self.ins.append(Ins('; ' + c))
    def fix_hazards(self, window=24):
        changed = True
        guard = 0
        while changed and guard < 50:
            guard += 1
            changed = False
            out = []
            for idx, C in enumerate(self.ins):
                if not (C.is_label or C.is_raw):
                    need = 0
                    dist = 0
                    for P in reversed(out[-window*2:]):
                        if P.is_label or P.is_raw: continue
                        r = required(P, C)
                        if r > dist: need = max(need, r - dist)
                        dist += P.waitstates()
                        if dist > window: break
                    if need > 0:
                        out.append(Ins(f's_nop {need-1}'))
                        changed = True
                out.append(C)
            self.ins = out
        labels = {}
        for i, x in enumerate(self.ins):
            if x.is_label: labels[x.text.split(';')[0].strip()[:-1]] = i
        i = 0
        while i < len(self.ins):
            x = self.ins[i]
            if x.mn.startswith('s_cbranch') or x.mn == 's_branch':
                tgt = x.ops[0]
                if tgt in labels and labels[tgt] < i:
                    tail = [y for y in self.ins[max(0, i - window):i + 1] if not (y.is_label or y.is_raw)]
                    head = [y for y in self.ins[labels[tgt]:labels[tgt] + 2 * window] if not (y.is_label or y.is_raw)]
                    need = 0
                    for ci, C in enumerate(head):
                        dist = sum(h.waitstates() for h in head[:ci])
                        if dist > window: break
                        d2 = dist
                        for P in reversed(tail):
                            r = required(P, C)
                            if r > d2: need = max(need, r - d2)
                            d2 += P.waitstates()
                    if need > 0:
                        self.ins.insert(i, Ins(f's_nop {need-1}'))
                        for k in labels:
                            if labels[k] >= i: labels[k] += 1
                        i += 1
            i += 1
    def text(self):
        return '\n'.join(('' if x.is_label else '    ') + x.text for x in self.ins) + '\n'
    def max_regs(self):
        mv = ma = ms = -1
        for x in self.ins:
            for r in x.defs + x.uses:
                if not r[1:].isdigit(): continue
                if r[0] == 'v': mv = max(mv, int(r[1:]))
                elif r[0] == 'a': ma = max(ma, int(r[1:]))
                elif r[0] == 's' and r[1:].isdigit(): ms = max(ms, int(r[1:]))
        return mv, ma, ms
```

```python
from asmlib import *
from gemm import KARG, WS, RA, emit_srd
import struct, math

def f2u(x):
    return struct.unpack('<I', struct.pack('<f', x))[0]

def gen_attn(name):
    b = Builder()
    NCH = 16
    STG = 16384
    lds_total = 2 * STG
    sQ, sO = 8, 12
    s_h, s_qt, s_tmp, s_c, s_wv = 16, 17, 18, 22, 23
    ra = RA(1)
    vt = [ra.alloc() for _ in range(6)]
    v_go = ra.alloc()
    v_lw = [ra.alloc() for _ in range(2)]
    v_kr = [ra.alloc() for _ in range(2)]
    v_vr = [ra.alloc() for _ in range(2)]
    stK = [ra.alloc(4, 4) for _ in range(2)]
    stV = [ra.alloc(4, 4) for _ in range(2)]
    qf = [ra.alloc(4, 4) for _ in range(2)]
    kf = [ra.alloc(4, 4) for _ in range(2)]
    vf = [ra.alloc(4, 4) for _ in range(2)]
    Sb = [ra.alloc(16, 4) for _ in range(2)]
    Oa = ra.alloc(16, 4)
    pf = ra.alloc(8, 4)
    v_m = ra.alloc(); v_mx = ra.alloc(); v_mx2 = ra.alloc(); v_al = ra.alloc()

    b.label(name)
    b('s_cmp_ge_u32 s2, 256')
    b(f's_cbranch_scc1 L_{name}_end')
    b(f's_load_dwordx2 s[4:5], s[0:1], {KARG["ws"]}')
    b(f's_lshr_b32 s{s_h}, s2, 4')
    b(f's_and_b32 s{s_tmp}, s2, 15')
    b(f'v_lshrrev_b32 v{vt[0]}, 6, v0')
    b(f'v_readfirstlane_b32 s{s_wv}, v{vt[0]}')
    b(f's_lshl_b32 s{s_qt}, s{s_tmp}, 2')
    b(f's_add_u32 s{s_qt}, s{s_qt}, s{s_wv}')
    b(f's_mov_b32 s{s_c}, 0x{f2u(28 ** -0.5 * math.log2(math.e)):x}')
    b('s_waitcnt lgkmcnt(0)')
    emit_srd(b, sQ, 4, WS['QKV'], 48 * 2048 * 64)
    emit_srd(b, sO, 4, WS['OB'], 2048 * 448 * 2)
    lane = vt[5]
    b(f'v_and_b32 v{lane}, 63, v0')
    b(f's_lshl_b32 s{s_tmp}, s{s_h}, 17')
    b(f's_lshl_b32 s{s_tmp+1}, s{s_qt}, 11')
    b(f's_add_u32 s{s_tmp}, s{s_tmp}, s{s_tmp+1}')
    b(f'v_lshlrev_b32 v{vt[0]}, 4, v{lane}')
    b(f'buffer_load_dwordx4 {V(qf[0],4)}, v{vt[0]}, s[{sQ}:{sQ+3}], s{s_tmp} offen')
    b(f'buffer_load_dwordx4 {V(qf[1],4)}, v{vt[0]}, s[{sQ}:{sQ+3}], s{s_tmp} offen offset:1024')
    b(f'v_lshlrev_b32 v{v_go}, 4, v0')
    b(f'v_add_u32 v{v_lw[0]}, 0, v{v_go}')
    b(f'v_add_u32 v{v_lw[1]}, {STG}, v{v_go}')
    b(f'v_lshlrev_b32 v{v_kr[0]}, 4, v{lane}')
    b(f'v_add_u32 v{v_kr[1]}, {STG}, v{v_kr[0]}')
    t0, t1, t2 = vt[0], vt[1], vt[2]
    b(f'v_bfe_u32 v{t0}, v{lane}, 5, 1')
    b(f'v_bfe_u32 v{t1}, v{lane}, 2, 2')
    b(f'v_lshl_add_u32 v{t0}, v{t0}, 2, v{t1}')
    b(f'v_lshlrev_b32 v{t0}, 6, v{t0}')
    b(f'v_bfe_u32 v{t1}, v{lane}, 4, 1')
    b(f'v_lshl_add_u32 v{t0}, v{t1}, 5, v{t0}')
    b(f'v_and_b32 v{t1}, 3, v{lane}')
    b(f'v_lshl_add_u32 v{t0}, v{t1}, 3, v{t0}')
    b(f'v_add_u32 v{v_vr[0]}, 8192, v{t0}')
    b(f'v_add_u32 v{v_vr[1]}, {STG + 8192}, v{t0}')
    s_k, s_v = 19, 20
    b(f's_add_u32 s{s_tmp}, s{s_h}, 16')
    b(f's_lshl_b32 s{s_k}, s{s_tmp}, 17')
    b(f's_add_u32 s{s_tmp}, s{s_h}, 32')
    b(f's_lshl_b32 s{s_v}, s{s_tmp}, 17')
    def issue_loads():
        for j in range(2):
            b(f'buffer_load_dwordx4 {V(stK[j],4)}, v{v_go}, s[{sQ}:{sQ+3}], s{s_k} offen offset:{j*4096-0}' if j == 0 else
              f'buffer_load_dwordx4 {V(stK[j],4)}, v{v_go}, s[{sQ}:{sQ+3}], s{s_k} offen offset:4095')
    v_go2 = ra.alloc()
    b(f'v_add_u32 v{v_go2}, 4096, v{v_go}')
    def issue_loads():
        b(f'buffer_load_dwordx4 {V(stK[0],4)}, v{v_go}, s[{sQ}:{sQ+3}], s{s_k} offen')
        b(f'buffer_load_dwordx4 {V(stK[1],4)}, v{v_go2}, s[{sQ}:{sQ+3}], s{s_k} offen')
        b(f'buffer_load_dwordx4 {V(stV[0],4)}, v{v_go}, s[{sQ}:{sQ+3}], s{s_v} offen')
        b(f'buffer_load_dwordx4 {V(stV[1],4)}, v{v_go2}, s[{sQ}:{sQ+3}], s{s_v} offen')
        b(f's_add_u32 s{s_k}, s{s_k}, 8192')
        b(f's_add_u32 s{s_v}, s{s_v}, 8192')
    def write_stage(buf):
        b(f'ds_write_b128 v{v_lw[buf]}, {V(stK[0],4)}')
        b(f'ds_write_b128 v{v_lw[buf]}, {V(stK[1],4)} offset:4096')
        b(f'ds_write_b128 v{v_lw[buf]}, {V(stV[0],4)} offset:8192')
        b(f'ds_write_b128 v{v_lw[buf]}, {V(stV[1],4)} offset:12288')
    def read_k(buf, tt):
        b(f'ds_read_b128 {V(kf[0],4)}, v{v_kr[buf]} offset:{tt*2048}')
        b(f'ds_read_b128 {V(kf[1],4)}, v{v_kr[buf]} offset:{tt*2048+1024}')
    def read_v(buf, tt):
        for u in range(2):
            for bb in range(2):
                b(f'ds_read_b64_tr_b16 {V(vf[u]+2*bb,2)}, v{v_vr[buf]} offset:{tt*2048 + (u*16+bb*8)*64}')
    def qk(sb):
        b(f'v_mfma_f32_32x32x16_bf16 {V(Sb[sb],16)}, {V(kf[0],4)}, {V(qf[0],4)}, 0')
        b(f'v_mfma_f32_32x32x16_bf16 {V(Sb[sb],16)}, {V(kf[1],4)}, {V(qf[1],4)}, {V(Sb[sb],16)}')
    def softmax(sb):
        Sr = Sb[sb]
        b(f'v_max3_f32 v{v_mx}, v{Sr}, v{Sr+1}, v{Sr+2}')
        for i in range(3, 15, 2):
            b(f'v_max3_f32 v{v_mx}, v{v_mx}, v{Sr+i}, v{Sr+i+1}')
        b(f'v_max_f32 v{v_mx}, v{v_mx}, v{Sr+15}')
        b(f'v_mov_b32 v{v_mx2}, v{v_mx}')
        b(f'v_permlane32_swap_b32 v{v_mx}, v{v_mx2}')
        b(f'v_max_f32 v{v_mx}, v{v_mx}, v{v_mx2}')
        b(f'v_mul_f32 v{v_mx}, s{s_c}, v{v_mx}')
        b(f'v_max_f32 v{v_mx}, v{v_mx}, v{v_m}')
        b(f'v_sub_f32 v{v_al}, v{v_m}, v{v_mx}')
        b(f'v_exp_f32 v{v_al}, v{v_al}')
        b(f'v_mov_b32 v{v_m}, v{v_mx}')
        for i in range(16):
            b(f'v_fma_f32 v{Sr+i}, v{Sr+i}, s{s_c}, -v{v_m}')
            b(f'v_exp_f32 v{Sr+i}, v{Sr+i}')
        for i in range(8):
            b(f'v_cvt_pk_bf16_f32 v{pf+i}, v{Sr+2*i}, v{Sr+2*i+1}')
        for i in range(16):
            b(f'v_mul_f32 v{Oa+i}, v{v_al}, v{Oa+i}')
    def pv():
        b(f'v_mfma_f32_32x32x16_bf16 {V(Oa,16)}, {V(vf[0],4)}, {V(pf,4)}, {V(Oa,16)}')
        b(f'v_mfma_f32_32x32x16_bf16 {V(Oa,16)}, {V(vf[1],4)}, {V(pf+4,4)}, {V(Oa,16)}')

    b(f'v_mov_b32 v{v_m}, 0xff800000')
    b(f'v_mov_b32 v{v_m}, 0xf149f2ca')
    for i in range(16):
        b(f'v_mov_b32 v{Oa+i}, 0')
    issue_loads()
    b('s_waitcnt vmcnt(0)')
    write_stage(0)
    b('s_waitcnt lgkmcnt(0)')
    b('s_barrier')
    b(f's_mov_b32 s21, 0')
    b.label(f'L_{name}_loop')
    for buf in range(2):
        issue_loads()
        read_k(buf, 0)
        b('s_waitcnt lgkmcnt(0)')
        qk(0)
        for tt in range(4):
            sb = tt & 1
            if tt < 3:
                read_k(buf, tt + 1)
                b('s_waitcnt lgkmcnt(0)')
                qk(sb ^ 1)
            read_v(buf, tt)
            softmax(sb)
            b('s_waitcnt lgkmcnt(0)')
            pv()
        b('s_waitcnt vmcnt(0)')
        write_stage(buf ^ 1)
        b('s_waitcnt lgkmcnt(0)')
        b('s_barrier')
    b(f's_add_u32 s21, s21, 2')
    b(f's_cmp_lt_u32 s21, {NCH}')
    b(f's_cbranch_scc1 L_{name}_loop')
    b(f'v_mov_b32 v{v_mx}, v{Oa+12}')
    b(f'v_mov_b32 v{v_mx2}, v{Oa+12}')
    b(f'v_permlane32_swap_b32 v{v_mx}, v{v_mx2}')
    b(f'v_rcp_f32 v{v_al}, v{v_mx2}')
    t0, t1 = vt[0], vt[1]
    b(f'v_and_b32 v{t0}, 31, v{lane}')
    b(f's_lshl_b32 s{s_tmp}, s{s_qt}, 5')
    b(f'v_add_u32 v{t0}, s{s_tmp}, v{t0}')
    b(f'v_mul_u32_u24 v{t0}, 896, v{t0}')
    b(f'v_bfe_u32 v{t1}, v{lane}, 5, 1')
    b(f'v_lshl_add_u32 v{t0}, v{t1}, 3, v{t0}')
    b(f's_mul_i32 s{s_tmp}, s{s_h}, 56')
    b(f'v_add_u32 v{t0}, s{s_tmp}, v{t0}')
    for bb in range(4):
        for r in range(4):
            b(f'v_mul_f32 v{Oa+4*bb+r}, v{v_al}, v{Oa+4*bb+r}')
        b(f'v_cvt_pk_bf16_f32 v{pf}, v{Oa+4*bb}, v{Oa+4*bb+1}')
        b(f'v_cvt_pk_bf16_f32 v{pf+1}, v{Oa+4*bb+2}, v{Oa+4*bb+3}')
        if bb == 3:
            b(f'v_cmp_gt_u32 vcc, 32, v{lane}')
            b(f's_and_saveexec_b64 s[24:25], vcc')
        b(f'buffer_store_dwordx2 {V(pf,2)}, v{t0}, s[{sO}:{sO+3}], 0 offen offset:{bb*16}')
        if bb == 3:
            b(f's_mov_b64 exec, s[24:25]')
    b.label(f'L_{name}_end')
    b('s_endpgm')
    b.fix_hazards()
    mv, ma, ms = b.max_regs()
    return dict(name=name, text=b.text(), vgpr=mv + 1, agpr=0, sgpr=32, lds=lds_total, nwg=256)
```

```python
from asmlib import *

KARG = dict(A_x=0, wqkv=8, wo=16, B_x=24, w1=32, w3=40, w2=48, out=56, dbg=64, ws=72)
WS = dict(X1=0, X2=2<<20, QKV=4<<20, OB=10<<20, HB=12<<20)
M = 2048

class RA:
    def __init__(self, start=0):
        self.n = start
    def alloc(self, cnt=1, align=1):
        self.n = (self.n + align - 1) // align * align
        r = self.n
        self.n += cnt
        return r

def log2(x):
    r = x.bit_length() - 1
    assert (1 << r) == x, x
    return r

def emit_srd(b, sreg, ptr_s, off, nbytes):
    if off:
        b(f's_add_u32 s{sreg}, s{ptr_s}, 0x{off:x}')
        b(f's_addc_u32 s{sreg+1}, s{ptr_s+1}, 0')
    else:
        b(f's_mov_b32 s{sreg}, s{ptr_s}')
        b(f's_mov_b32 s{sreg+1}, s{ptr_s+1}')
    b(f's_mov_b32 s{sreg+2}, 0x{nbytes:x}')
    b(f's_mov_b32 s{sreg+3}, 0x00020000')

def divconst(b, dst, src, d, tmp_s):
    magic = (1 << 32) // d + 1
    b(f's_mov_b32 s{tmp_s}, 0x{magic:x}')
    b(f'v_mul_hi_u32 {dst}, {src}, s{tmp_s}')

def gen_gemm(name, *, N, K, BM, BN, BK, a_src, w_srcs, ln, epi, out_dst=None, res_src=None, ldo=None, init_pads=False):
    b = Builder()
    nW = len(w_srcs)
    BNq = BN // nW
    NT = N // BNq
    MT = M // BM
    nwg = NT * MT
    nit = K // BK
    KS = BK // 32
    WM = BM // 2; WN = BN // 2
    a_ = WM // 16
    b_ = WN // 16
    bq = b_ // nW
    rowA = BK * 2
    rowB = max(256, ((BN * 2 + 255) // 256) * 256)
    sizeA = BM * rowA
    sizeB = BK * rowB
    stage = sizeA + sizeB
    STATS = 0
    CSUM = STATS + BM * 8
    LBASE = (CSUM + BN * 4 + 255) // 256 * 256
    lds_total = LBASE + 2 * stage
    CA = BK // 8
    nA = BM * CA // 256
    CB = BNq // 8
    nB = BK * CB // 256
    assert BM * CA % 256 == 0 and BK * CB % 256 == 0

    sA, sB0, sB1, sO, sR = 8, 12, 16, 20, 24
    s_tm, s_tn = 28, 29
    s_tmp = 44
    s_ones = 50
    s_wv = 51
    ra = RA(1)
    vtid = 0
    ra.alloc(1)
    vt = [ra.alloc() for _ in range(8)]
    vA_go = [ra.alloc() for _ in range(nA)]
    vA_lw = [[ra.alloc() for _ in range(nA)] for _ in range(2)]
    vB_go = [[ra.alloc() for _ in range(nB)] for _ in range(nW)]
    vB_lw = [[[ra.alloc() for _ in range(nB)] for _ in range(nW)] for _ in range(2)]
    vA_rd = [[ra.alloc() for _ in range(KS)] for _ in range(2)]
    vB_rd = [[ra.alloc() for _ in range(b_)] for _ in range(2)]
    stA = [ra.alloc(4, 4) for _ in range(nA)]
    stB = [[ra.alloc(4, 4) for _ in range(nB)] for _ in range(nW)]
    xf = [[ra.alloc(4, 4) for _ in range(a_)] for _ in range(2)]
    wf = [[ra.alloc(4, 4) for _ in range(b_)] for _ in range(2)]
    if ln:
        v_sum = [ra.alloc() for _ in range(nA)]
        v_sq = [ra.alloc() for _ in range(nA)]
        v_cs = [ra.alloc() for _ in range(b_)]
        v_ones = ra.alloc()
    use_agpr = True
    acc = lambda ja, jb: A((ja * b_ + jb) * 4, 4)
    n_acc = a_ * b_ * 4

    b.label(f'{name}')
    b(f's_cmp_ge_u32 s2, {nwg}')
    b(f's_cbranch_scc1 L_{name}_end')
    b(f's_load_dwordx2 s[4:5], s[0:1], {KARG["ws"]}')
    if a_src[0] == 'karg':
        b(f's_load_dwordx2 s[6:7], s[0:1], {KARG[a_src[1]]}')
    b(f's_load_dwordx2 s[34:35], s[0:1], {KARG[w_srcs[0]]}')
    if nW > 1:
        b(f's_load_dwordx2 s[36:37], s[0:1], {KARG[w_srcs[1]]}')
    if out_dst and out_dst[0] == 'karg':
        b(f's_load_dwordx2 s[38:39], s[0:1], {KARG[out_dst[1]]}')
    if res_src and res_src[0] == 'karg':
        b(f's_load_dwordx2 s[40:41], s[0:1], {KARG[res_src[1]]}')
    magic = (1 << 32) // NT + 1
    b(f's_mov_b32 s{s_tmp}, 0x{magic:x}')
    b(f's_mul_hi_u32 s{s_tm}, s2, s{s_tmp}')
    b(f's_mul_i32 s{s_tmp}, s{s_tm}, {NT}')
    b(f's_sub_u32 s{s_tn}, s2, s{s_tmp}')
    b(f's_mov_b32 s{s_ones}, 0x3f803f80')
    b('s_waitcnt lgkmcnt(0)')
    if a_src[0] == 'karg':
        emit_srd(b, sA, 6, 0, M * K * 2)
    else:
        emit_srd(b, sA, 4, a_src[1], M * K * 2)
    emit_srd(b, sB0, 34, 0, K * N * 2)
    if nW > 1:
        emit_srd(b, sB1, 36, 0, K * N * 2)
    if epi == 'qkv':
        emit_srd(b, sO, 4, WS['QKV'], 48 * M * 64)
    else:
        if out_dst[0] == 'karg': emit_srd(b, sO, 38, 0, M * ldo * 2)
        else: emit_srd(b, sO, 4, out_dst[1], M * ldo * 2)
    if res_src:
        if res_src[0] == 'karg': emit_srd(b, sR, 40, 0, M * ldo * 2)
        else: emit_srd(b, sR, 4, res_src[1], M * ldo * 2)
    b(f'v_lshrrev_b32 v{vt[0]}, 6, v0')
    b(f'v_readfirstlane_b32 s{s_wv}, v{vt[0]}')
    lCA = log2(CA)
    b(f's_mul_i32 s{s_tmp}, s{s_tm}, {BM * K * 2}')
    for j in range(nA):
        t0, t1, t2 = vt[0], vt[1], vt[2]
        b(f'v_add_u32 v{t0}, {256 * j}, v0')
        b(f'v_lshrrev_b32 v{t1}, {lCA}, v{t0}')
        b(f'v_and_b32 v{t2}, {CA - 1}, v{t0}')
        b(f'v_mul_u32_u24 v{vA_go[j]}, {K * 2}, v{t1}')
        b(f'v_lshl_add_u32 v{vA_go[j]}, v{t2}, 4, v{vA_go[j]}')
        b(f'v_add_u32 v{vA_go[j]}, s{s_tmp}, v{vA_go[j]}')
        if rowA == 128:
            b(f'v_bfe_u32 v{t0}, v{t1}, 1, 3')
        else:
            b(f'v_and_b32 v{t0}, 15, v{t1}')
        b(f'v_xor_b32 v{t0}, v{t0}, v{t2}')
        b(f'v_lshlrev_b32 v{t0}, 4, v{t0}')
        b(f'v_mul_u32_u24 v{t1}, {rowA}, v{t1}')
        b(f'v_add_u32 v{t0}, v{t0}, v{t1}')
        b(f'v_add_u32 v{vA_lw[0][j]}, {LBASE}, v{t0}')
        b(f'v_add_u32 v{vA_lw[1][j]}, {LBASE + stage}, v{t0}')
    for q in range(nW):
        b(f's_mul_i32 s{s_tmp}, s{s_tn}, {BNq * 2}')
        for j in range(nB):
            t0, t1, t2, t3 = vt[0], vt[1], vt[2], vt[3]
            b(f'v_add_u32 v{t0}, {256 * j}, v0')
            if CB & (CB - 1) == 0:
                b(f'v_lshrrev_b32 v{t1}, {log2(CB)}, v{t0}')
                b(f'v_and_b32 v{t2}, {CB - 1}, v{t0}')
            else:
                divconst(b, f'v{t1}', f'v{t0}', CB, s_tmp + 3)
                b(f'v_mul_u32_u24 v{t2}, {CB}, v{t1}')
                b(f'v_sub_u32 v{t2}, v{t0}, v{t2}')
            b(f'v_mul_u32_u24 v{vB_go[q][j]}, {N * 2}, v{t1}')
            b(f'v_lshl_add_u32 v{vB_go[q][j]}, v{t2}, 4, v{vB_go[q][j]}')
            b(f'v_add_u32 v{vB_go[q][j]}, s{s_tmp}, v{vB_go[q][j]}')
            b(f'v_add_u32 v{t2}, {q * CB}, v{t2}')
            b(f'v_and_b32 v{t0}, 3, v{t1}')
            b(f'v_bfe_u32 v{t3}, v{t1}, 3, 1')
            b(f'v_lshl_or_b32 v{t0}, v{t3}, 2, v{t0}')
            b(f'v_lshrrev_b32 v{t3}, 1, v{t2}')
            b(f'v_xor_b32 v{t0}, v{t0}, v{t3}')
            b(f'v_and_b32 v{t2}, 1, v{t2}')
            b(f'v_lshlrev_b32 v{t2}, 4, v{t2}')
            b(f'v_lshl_add_u32 v{t0}, v{t0}, 5, v{t2}')
            b(f'v_mul_u32_u24 v{t1}, {rowB}, v{t1}')
            b(f'v_add_u32 v{t0}, v{t0}, v{t1}')
            b(f'v_add_u32 v{vB_lw[0][q][j]}, {LBASE + sizeA}, v{t0}')
            b(f'v_add_u32 v{vB_lw[1][q][j]}, {LBASE + stage + sizeA}, v{t0}')
    li, lg = vt[4], vt[5]
    b(f'v_and_b32 v{li}, 15, v0')
    b(f'v_bfe_u32 v{lg}, v0, 4, 2')
    t0, t1, t2 = vt[0], vt[1], vt[2]
    b(f's_lshr_b32 s{s_tmp}, s{s_wv}, 1')
    b(f's_mul_i32 s{s_tmp}, s{s_tmp}, {WM * rowA}')
    if rowA == 128:
        b(f'v_bfe_u32 v{t0}, v{li}, 1, 3')
    else:
        b(f'v_mov_b32 v{t0}, v{li}')
    b(f'v_mul_u32_u24 v{t1}, {rowA}, v{li}')
    b(f'v_add_u32 v{t1}, s{s_tmp}, v{t1}')
    for s in range(KS):
        b(f'v_add_u32 v{t2}, {4 * s}, v{lg}')
        b(f'v_xor_b32 v{t2}, v{t2}, v{t0}')
        b(f'v_lshl_add_u32 v{t2}, v{t2}, 4, v{t1}')
        b(f'v_add_u32 v{vA_rd[0][s]}, {LBASE}, v{t2}')
        b(f'v_add_u32 v{vA_rd[1][s]}, {LBASE + stage}, v{t2}')
    b(f'v_lshrrev_b32 v{t0}, 2, v{li}')
    b(f'v_lshl_add_u32 v{t1}, v{lg}, 3, v{t0}')
    b(f'v_mul_u32_u24 v{t1}, {rowB}, v{t1}')
    b(f'v_and_b32 v{t2}, 3, v{li}')
    b(f'v_lshl_add_u32 v{t1}, v{t2}, 3, v{t1}')
    b(f'v_add_u32 v{t1}, {sizeA}, v{t1}')
    b(f'v_and_b32 v{t2}, 1, v{lg}')
    b(f'v_lshl_or_b32 v{t0}, v{t2}, 2, v{t0}')
    b(f's_and_b32 s{s_tmp}, s{s_wv}, 1')
    for jb in range(b_):
        q = jb // bq; jj = jb % bq
        b(f's_mul_i32 s{s_tmp+1}, s{s_tmp}, {bq}')
        b(f's_add_u32 s{s_tmp+1}, s{s_tmp+1}, {q * (BNq // 16) + jj}')
        b(f'v_xor_b32 v{t2}, s{s_tmp+1}, v{t0}')
        b(f'v_lshl_add_u32 v{t2}, v{t2}, 5, v{t1}')
        b(f'v_add_u32 v{vB_rd[0][jb]}, {LBASE}, v{t2}')
        b(f'v_add_u32 v{vB_rd[1][jb]}, {LBASE + stage}, v{t2}')
    if ln:
        b(f'v_mov_b32 v{v_ones}, s{s_ones}')
        for j in range(nA):
            b(f'v_mov_b32 v{v_sum[j]}, 0'); b(f'v_mov_b32 v{v_sq[j]}, 0')
        for jb in range(b_):
            b(f'v_mov_b32 v{v_cs[jb]}, 0')

    def issue_loads(it):
        for j in range(nA):
            b(f'buffer_load_dwordx4 {V(stA[j],4)}, v{vA_go[j]}, s[{sA}:{sA+3}], 0 offen offset:{it*BK*2}' if it * BK * 2 < 4096 else
              f'buffer_load_dwordx4 {V(stA[j],4)}, v{vA_go[j]}, s[{sA}:{sA+3}], s{s_tmp+2} offen')
        for q in range(nW):
            sB = sB0 if q == 0 else sB1
            for j in range(nB):
                b(f'buffer_load_dwordx4 {V(stB[q][j],4)}, v{vB_go[q][j]}, s[{sB}:{sB+3}], s{s_tmp+4} offen')
    def set_koffs(it):
        if it * BK * 2 >= 4096:
            b(f's_mov_b32 s{s_tmp+2}, {it*BK*2}')
        b(f's_mov_b32 s{s_tmp+4}, {it*BK*N*2}')
    def write_stage(buf):
        off = 0
        for j in range(nA):
            if ln:
                for d in range(4):
                    b(f'v_dot2_f32_bf16 v{v_sum[j]}, v{stA[j]+d}, v{v_ones}, v{v_sum[j]}')
                    b(f'v_dot2_f32_bf16 v{v_sq[j]}, v{stA[j]+d}, v{stA[j]+d}, v{v_sq[j]}')
            b(f'ds_write_b128 v{vA_lw[buf][j]}, {V(stA[j],4)}')
        for q in range(nW):
            for j in range(nB):
                b(f'ds_write_b128 v{vB_lw[buf][q][j]}, {V(stB[q][j],4)}')
    def read_frags(buf, s, fs):
        off = 0
        for ja in range(a_):
            b(f'ds_read_b128 {V(xf[fs][ja],4)}, v{vA_rd[buf][s]} offset:{off + ja*16*rowA}')
        for jb in range(b_):
            o = off + s * 32 * rowB
            b(f'ds_read_b64_tr_b16 {V(wf[fs][jb],2)}, v{vB_rd[buf][jb]} offset:{o}')
            b(f'ds_read_b64_tr_b16 {V(wf[fs][jb]+2,2)}, v{vB_rd[buf][jb]} offset:{o + 4*rowB}')
    nrd = a_ + 2 * b_
    def mfmas(fs, first):
        for ja in range(a_):
            for jb in range(b_):
                c = '0' if first else acc(ja, jb)
                b(f'v_mfma_f32_16x16x32_bf16 {acc(ja,jb)}, {V(wf[fs][jb],4)}, {V(xf[fs][ja],4)}, {c}')
        if ln:
            for jb in range(b_):
                for d in range(4):
                    b(f'v_dot2_f32_bf16 v{v_cs[jb]}, v{wf[fs][jb]+d}, v{v_ones}, v{v_cs[jb]}')

    set_koffs(0)
    issue_loads(0)
    b('s_waitcnt vmcnt(0)')
    write_stage(0)
    b('s_waitcnt lgkmcnt(0)')
    b('s_barrier')
    for it in range(nit):
        buf = it & 1
        if it + 1 < nit:
            set_koffs(it + 1)
            issue_loads(it + 1)
        for s in range(KS):
            read_frags(buf, s, s & 1)
        for s in range(KS):
            rem = (KS - 1 - s) * nrd
            b(f's_waitcnt lgkmcnt({min(rem,15)})')
            mfmas(s & 1, first=(it == 0 and s == 0))
        if it + 1 < nit:
            b('s_waitcnt vmcnt(0)')
            write_stage(buf ^ 1)
            b('s_waitcnt lgkmcnt(0)')
            b('s_barrier')

    t0, t1, t2, t3 = vt[0], vt[1], vt[2], vt[3]
    if ln:
        assert CA == 8
        for j in range(nA):
            for (vv) in (v_sum[j], v_sq[j]):
                b(f'v_add_f32_dpp v{vv}, v{vv}, v{vv} quad_perm:[1,0,3,2] row_mask:0xf bank_mask:0xf')
                b(f'v_add_f32_dpp v{vv}, v{vv}, v{vv} quad_perm:[2,3,0,1] row_mask:0xf bank_mask:0xf')
                b(f'v_add_f32_dpp v{vv}, v{vv}, v{vv} row_half_mirror row_mask:0xf bank_mask:0xf')
            b(f's_mov_b32 s{s_tmp}, 0x{__import__("struct").unpack("<I", __import__("struct").pack("<f", 1.0/K))[0]:x}')
            b(f'v_mul_f32 v{v_sum[j]}, s{s_tmp}, v{v_sum[j]}')
            b(f'v_mul_f32 v{v_sq[j]}, s{s_tmp}, v{v_sq[j]}')
            b(f'v_fma_f32 v{v_sq[j]}, -v{v_sum[j]}, v{v_sum[j]}, v{v_sq[j]}')
            b(f'v_max_f32 v{v_sq[j]}, 0, v{v_sq[j]}')
            b(f'v_add_f32 v{v_sq[j]}, 0x3727c5ac, v{v_sq[j]}')
            b(f'v_rsq_f32 v{v_sq[j]}, v{v_sq[j]}')
            b(f'v_add_u32 v{t0}, {256*j}, v0')
            b(f'v_lshrrev_b32 v{t0}, 3, v{t0}')
            b(f'v_lshlrev_b32 v{t0}, 3, v{t0}')
            b(f'v_mov_b32 v{v_sum[j]+0}, v{v_sum[j]}')
            b(f'v_mov_b32 v{vt[6]}, v{v_sum[j]}')
            b(f'v_mov_b32 v{vt[7]}, v{v_sq[j]}')
            b(f'v_and_b32 v{t1}, 7, v0')
            b(f'v_cmp_eq_u32 vcc, 0, v{t1}')
            b(f's_and_saveexec_b64 s[42:43], vcc')
            b(f'ds_write_b64 v{t0}, v[{vt[6]}:{vt[7]}] offset:{STATS}')
            b(f's_mov_b64 exec, s[42:43]')
        for jb in range(b_):
            b(f'v_mov_b32 v{t0}, v{v_cs[jb]}')
            b(f'v_permlane32_swap_b32 v{v_cs[jb]}, v{t0}')
            b(f'v_add_f32 v{v_cs[jb]}, v{v_cs[jb]}, v{t0}')
            b(f'v_mov_b32 v{t0}, v{v_cs[jb]}')
            b(f'v_permlane16_swap_b32 v{v_cs[jb]}, v{t0}')
            b(f'v_add_f32 v{v_cs[jb]}, v{v_cs[jb]}, v{t0}')
        b(f's_and_b32 s{s_tmp}, s{s_wv}, 1')
        b(f's_mul_i32 s{s_tmp}, s{s_tmp}, {WN*4}')
        b(f'v_lshlrev_b32 v{t0}, 2, v{li}')
        b(f'v_add_u32 v{t0}, s{s_tmp}, v{t0}')
        b(f'v_cmp_eq_u32 vcc, 0, v{lg}')
        b(f's_and_saveexec_b64 s[42:43], vcc')
        for jb in range(b_):
            b(f'ds_write_b32 v{t0}, v{v_cs[jb]} offset:{CSUM + jb*64}')
        b(f's_mov_b64 exec, s[42:43]')
        b('s_waitcnt lgkmcnt(0)')
        b('s_barrier')
    vrow = vt[6]; vcol = vt[7]
    b(f's_lshr_b32 s{s_tmp}, s{s_wv}, 1')
    b(f's_mul_i32 s{s_tmp}, s{s_tmp}, {WM}')
    b(f's_mul_i32 s{s_tmp+1}, s{s_tm}, {BM}')
    b(f's_add_u32 s{s_tmp}, s{s_tmp}, s{s_tmp+1}')
    b(f'v_add_u32 v{vrow}, s{s_tmp}, v{li}')
    b(f's_and_b32 s{s_tmp}, s{s_wv}, 1')
    b(f's_mul_i32 s{s_tmp}, s{s_tmp}, {bq*16}')
    b(f's_mul_i32 s{s_tmp+1}, s{s_tn}, {BNq}')
    b(f's_add_u32 s{s_tmp}, s{s_tmp}, s{s_tmp+1}')
    b(f'v_lshlrev_b32 v{vcol}, 2, v{lg}')
    b(f'v_add_u32 v{vcol}, s{s_tmp}, v{vcol}')
    ep = stA[0]
    ep2 = xf[0][0]
    ep3 = xf[1][0]
    if ln:
        vcl = ra.alloc()
        b(f's_and_b32 s{s_tmp}, s{s_wv}, 1')
        b(f's_mul_i32 s{s_tmp}, s{s_tmp}, {WN*4}')
        b(f'v_lshlrev_b32 v{vcl}, 4, v{lg}')
        b(f'v_add_u32 v{vcl}, s{s_tmp}, v{vcl}')
        vrl = ra.alloc()
        b(f's_lshr_b32 s{s_tmp}, s{s_wv}, 1')
        b(f's_mul_i32 s{s_tmp}, s{s_tmp}, {WM*8}')
        b(f'v_lshlrev_b32 v{vrl}, 3, v{li}')
        b(f'v_add_u32 v{vrl}, s{s_tmp}, v{vrl}')
        vms = ra.alloc(2, 2)
        vcsr = [wf[0][jb] for jb in range(b_)]
        for jb in range(b_):
            b(f'ds_read_b128 {V(vcsr[jb],4)}, v{vcl} offset:{CSUM + jb*64}')
    def load_acc(dst, ja, jb):
        for r in range(4):
            b(f'v_accvgpr_read_b32 v{dst+r}, a{(ja*b_+jb)*4+r}')
    def ln_fix(dst, jb):
        for r in range(4):
            b(f'v_fma_f32 v{dst+r}, -v{vms}, v{vcsr[jb]+r}, v{dst+r}')
            b(f'v_mul_f32 v{dst+r}, v{vms+1}, v{dst+r}')
    if epi == 'qkv':
        v_one_bf = ra.alloc()
        b(f'v_mov_b32 v{v_one_bf}, 0x3f80')
    for ja in range(a_):
        if ln:
            b(f'ds_read_b64 {V(vms,2)}, v{vrl} offset:{STATS + ja*16*8}')
            b('s_waitcnt lgkmcnt(0)')
        if epi == 'qkv':
            for jb in range(b_):
                load_acc(ep, ja, jb)
                ln_fix(ep, jb)
                b(f'v_cvt_pk_bf16_f32 v{ep2}, v{ep}, v{ep+1}')
                b(f'v_cvt_pk_bf16_f32 v{ep2+1}, v{ep+2}, v{ep+3}')
                b(f'v_add_u32 v{t0}, {jb*16}, v{vcol}')
                b(f'v_mul_u32_u24 v{t1}, 2341, v{t0}')
                b(f'v_lshrrev_b32 v{t1}, 16, v{t1}')
                b(f'v_mul_u32_u24 v{t2}, 28, v{t1}')
                b(f'v_sub_u32 v{t2}, v{t0}, v{t2}')
                b(f'v_add_u32 v{t0}, {ja*16}, v{vrow}')
                b(f'v_lshlrev_b32 v{ep3}, 17, v{t1}')
                b(f'v_lshrrev_b32 v{t3}, 5, v{t0}')
                b(f'v_lshl_add_u32 v{ep3+1}, v{t3}, 11, v{ep3}')
                b(f'v_lshrrev_b32 v{t3}, 4, v{t2}')
                b(f'v_lshl_add_u32 v{ep3+1}, v{t3}, 10, v{ep3+1}')
                b(f'v_bfe_u32 v{t3}, v{t2}, 3, 1')
                b(f'v_lshl_add_u32 v{ep3+1}, v{t3}, 9, v{ep3+1}')
                b(f'v_and_b32 v{t3}, 31, v{t0}')
                b(f'v_lshl_add_u32 v{ep3+1}, v{t3}, 4, v{ep3+1}')
                b(f'v_and_b32 v{t3}, 7, v{t2}')
                b(f'v_lshl_add_u32 v{ep3+1}, v{t3}, 1, v{ep3+1}')
                b(f'v_lshl_add_u32 v{ep3}, v{t0}, 6, v{ep3}')
                b(f'v_lshl_add_u32 v{ep3}, v{t2}, 1, v{ep3}')
                b(f'v_cmp_lt_u32 vcc, 31, v{t1}')
                b(f'v_cndmask_b32 v{t1}, v{ep3+1}, v{ep3}, vcc')
                b(f'buffer_store_dwordx2 {V(ep2,2)}, v{t1}, s[{sO}:{sO+3}], 0 offen')
                b(f'v_cndmask_b32 v{ep3}, 0, v{v_one_bf}, vcc')
                b(f'v_mov_b32 v{ep3+1}, 0')
                b(f'v_cmp_eq_u32 vcc, 24, v{t2}')
                b(f's_and_saveexec_b64 s[42:43], vcc')
                b(f'buffer_store_dwordx2 {V(ep3,2)}, v{t1}, s[{sO}:{sO+3}], 0 offen offset:8')
                b(f's_mov_b64 exec, s[42:43]')
        elif epi == 'resid':
            b(f'v_add_u32 v{t0}, {ja*16}, v{vrow}')
            b(f'v_mul_u32_u24 v{t0}, {ldo*2}, v{t0}')
            b(f'v_lshl_add_u32 v{t0}, v{vcol}, 1, v{t0}')
            for jb in range(b_):
                b(f'buffer_load_dwordx2 {V(ep3,2)}, v{t0}, s[{sR}:{sR+3}], 0 offen offset:{jb*32}')
                load_acc(ep, ja, jb)
                b('s_waitcnt vmcnt(0)')
                b(f'v_lshlrev_b32 v{ep2}, 16, v{ep3}')
                b(f'v_and_b32 v{ep2+1}, 0xffff0000, v{ep3}')
                b(f'v_lshlrev_b32 v{ep2+2}, 16, v{ep3+1}')
                b(f'v_and_b32 v{ep2+3}, 0xffff0000, v{ep3+1}')
                for r in range(4):
                    b(f'v_add_f32 v{ep+r}, v{ep+r}, v{ep2+r}')
                b(f'v_cvt_pk_bf16_f32 v{ep2}, v{ep}, v{ep+1}')
                b(f'v_cvt_pk_bf16_f32 v{ep2+1}, v{ep+2}, v{ep+3}')
                b(f'buffer_store_dwordx2 {V(ep2,2)}, v{t0}, s[{sO}:{sO+3}], 0 offen offset:{jb*32}')
        elif epi == 'swiglu':
            b(f'v_add_u32 v{t0}, {ja*16}, v{vrow}')
            b(f'v_mul_u32_u24 v{t0}, {ldo*2}, v{t0}')
            b(f'v_lshl_add_u32 v{t0}, v{vcol}, 1, v{t0}')
            for jj in range(bq):
                load_acc(ep, ja, jj)
                ln_fix(ep, jj)
                load_acc(ep3, ja, jj + bq)
                ln_fix(ep3, jj + bq)
                for r in range(4):
                    b(f'v_mul_f32 v{ep2}, 0xbfb8aa3b, v{ep+r}')
                    b(f'v_exp_f32 v{ep2}, v{ep2}')
                    b(f'v_add_f32 v{ep2}, 1.0, v{ep2}')
                    b(f'v_rcp_f32 v{ep2}, v{ep2}')
                    b(f'v_mul_f32 v{ep+r}, v{ep+r}, v{ep3+r}')
                    b(f'v_mul_f32 v{ep+r}, v{ep+r}, v{ep2}')
                b(f'v_cvt_pk_bf16_f32 v{ep2}, v{ep}, v{ep+1}')
                b(f'v_cvt_pk_bf16_f32 v{ep2+1}, v{ep+2}, v{ep+3}')
                b(f'buffer_store_dwordx2 {V(ep2,2)}, v{t0}, s[{sO}:{sO+3}], 0 offen offset:{jj*32}')
    b.label(f'L_{name}_end')
    b('s_endpgm')
    b.fix_hazards()
    mv, ma, ms = b.max_regs()
    return dict(name=name, text=b.text(), vgpr=mv + 1, agpr=ma + 1, sgpr=max(ms + 1, 52), lds=lds_total, nwg=nwg)
```

```python
import sys
from gemm import *
from attn import gen_attn

HEADER = """; Kernarg layout for this problem (80 bytes, ptrs only, base s[0:1]):
;   offset   8: d_in[1] A_wqkv  shape=(448, 1344) dtype=bfloat16
"""

def assemble(kernels, launches, path):
    kd = {k['name']: k for k in kernels}
    s = HEADER
    for n in launches:
        k = kd[n]
        s += f"; @launch kernel={n} grid=({k['nwg']},1,1) block=({k.get('threads',256)},1,1) lds={k['lds']}\n"
    s += '.amdgcn_target "amdgcn-amd-amdhsa--gfx950"\n.text\n'
    for k in kernels:
        s += f".globl {k['name']}\n.p2align 8\n.type {k['name']},@function\n"
        s += k['text']
    s += '.section .rodata,"a"\n'
    for k in kernels:
        acc_off = (k['vgpr'] + 3) // 4 * 4
        nfv = acc_off + k['agpr'] if k['agpr'] else k['vgpr']
        s += f""".p2align 6
.amdhsa_kernel {k['name']}
  .amdhsa_next_free_vgpr {nfv}
  .amdhsa_next_free_sgpr {k['sgpr']}
  .amdhsa_accum_offset {acc_off}
  .amdhsa_group_segment_fixed_size 0
  .amdhsa_kernarg_size 80
  .amdhsa_user_sgpr_count 2
  .amdhsa_user_sgpr_kernarg_segment_ptr 1
  .amdhsa_system_sgpr_workgroup_id_x 1
.end_amdhsa_kernel
"""
    open(path, 'w').write(s)

if __name__ == "__main__":
    which = sys.argv[1] if len(sys.argv) > 1 else 'qkv'
    if which == 'gemms':
        ks = [
            gen_gemm('wo0_kernel', N=448, K=448, BM=64, BN=64, BK=64, a_src=('ws', WS['OB']), w_srcs=['wo'], ln=False, epi='resid', out_dst=('ws', WS['X1']), res_src=('karg','A_x'), ldo=448),
            gen_gemm('ffn1_0_kernel', N=1792, K=448, BM=128, BN=256, BK=64, a_src=('ws', WS['X1']), w_srcs=['w1','w3'], ln=True, epi='swiglu', out_dst=('ws', WS['HB']), ldo=1792),
            gen_gemm('ffn2_0_kernel', N=448, K=1792, BM=64, BN=64, BK=64, a_src=('ws', WS['HB']), w_srcs=['w2'], ln=False, epi='resid', out_dst=('ws', WS['X2']), res_src=('ws', WS['X1']), ldo=448),
        ]
        for k in ks: print(k['name'], k['vgpr'], k['agpr'], k['lds'], k['nwg'], len(k['text'].split('\n')))
        assemble(ks, [k['name'] for k in ks], 'test_gemms.s')
    if which == 'full':
        ks = []
        for L in range(2):
            xin = ('karg', 'A_x') if L == 0 else ('ws', WS['X2'])
            xout = ('ws', WS['X2']) if L == 0 else ('karg', 'out')
            ks.append(gen_gemm(f'qkv{L}_kernel', N=1344, K=448, BM=128, BN=96, BK=64, a_src=xin, w_srcs=['wqkv'], ln=True, epi='qkv'))
            if L == 0: ks.append(gen_attn('attn_kernel'))
            ks.append(gen_gemm(f'wo{L}_kernel', N=448, K=448, BM=64, BN=64, BK=64, a_src=('ws', WS['OB']), w_srcs=['wo'], ln=False, epi='resid', out_dst=('ws', WS['X1']), res_src=xin, ldo=448))
            if L == 0:
                ks.append(gen_gemm('ffn1_kernel', N=1792, K=448, BM=128, BN=256, BK=64, a_src=('ws', WS['X1']), w_srcs=['w1','w3'], ln=True, epi='swiglu', out_dst=('ws', WS['HB']), ldo=1792))
            ks.append(gen_gemm(f'ffn2_{L}_kernel', N=448, K=1792, BM=64, BN=64, BK=64, a_src=('ws', WS['HB']), w_srcs=['w2'], ln=False, epi='resid', out_dst=xout, res_src=('ws', WS['X1']), ldo=448))
        launches = []
        for L in range(2):
            launches += [f'qkv{L}_kernel', 'attn_kernel', f'wo{L}_kernel', 'ffn1_kernel', f'ffn2_{L}_kernel']
        out = sys.argv[2] if len(sys.argv) > 2 else 'interleave_layers__mha_block__glu_gated_swiglu__prompt.s'
        assemble(ks, launches, out)
    if which == 'qa':
        k1 = gen_gemm('qkv0_kernel', N=1344, K=448, BM=128, BN=96, BK=64, a_src=('karg', 'A_x'), w_srcs=['wqkv'], ln=True, epi='qkv')
        k2 = gen_attn('attn_kernel')
        for k in (k1,k2): print(k['name'], k['vgpr'], k['agpr'], k['lds'], k['nwg'], len(k['text'].split('\n')))
        assemble([k1,k2], ['qkv0_kernel','attn_kernel'], 'test_qa.s')
    if which == 'qkv':
        k = gen_gemm('qkv0_kernel', N=1344, K=448, BM=128, BN=96, BK=64, a_src=('karg', 'A_x'), w_srcs=['wqkv'], ln=True, epi='qkv')
        print(k['vgpr'], k['agpr'], k['lds'], k['nwg'], len(k['text'].split('\n')))
        assemble([k], ['qkv0_kernel'], 'test_qkv.s')
```

```python
import re

def V(n, cnt=1):
    return f"v{n}" if cnt == 1 else f"v[{n}:{n+cnt-1}]"
def A(n, cnt=1):
    return f"a{n}" if cnt == 1 else f"a[{n}:{n+cnt-1}]"
def S(n, cnt=1):
    return f"s{n}" if cnt == 1 else f"s[{n}:{n+cnt-1}]"

_REG_RE = re.compile(r'^(-|\|)?([vas])(\d+)\|?$')
_RNG_RE = re.compile(r'^(-|\|)?([vas])\[(\d+):(\d+)\]\|?$')

def regs_of(tok):
    tok = tok.strip()
    m = _REG_RE.match(tok)
    if m:
        return [m.group(2) + m.group(3)]
    m = _RNG_RE.match(tok)
    if m:
        return [m.group(2) + str(i) for i in range(int(m.group(3)), int(m.group(4)) + 1)]
    if tok in ('vcc', 'exec', 'm0', 'scc'):
        return [tok]
    return []

TRANS = ('v_exp_f32', 'v_log_f32', 'v_rcp_f32', 'v_rsq_f32', 'v_sqrt_f32', 'v_sin_f32', 'v_cos_f32')

class Ins:
    __slots__ = ('text', 'mn', 'defs', 'uses', 'kind', 'ops', 'cregs', 'passes', 'is_label', 'is_raw')
    def __init__(self, text):
        self.text = text
        self.is_label = False
        self.is_raw = False
        t = text.split(';')[0].strip()
        self.defs = []; self.uses = []; self.kind = 'other'; self.cregs = []; self.passes = 0
        if not t:
            self.is_raw = True; self.mn = ''; return
        if t.endswith(':'):
            self.is_label = True; self.mn = ''; return
        parts = t.split(None, 1)
        mn = parts[0]
        self.mn = mn
        ops = []
        if len(parts) > 1:
            rest = parts[1]
            ops = [o.strip() for o in rest.split(',')]
        self.ops = ops
        base = mn.replace('_e32', '').replace('_e64', '').replace('_dpp', '').replace('_sdwa', '')
        def opregs(i):
            if i >= len(ops): return []
            tok = ops[i].split()[0] if ops[i].split() else ''
            return regs_of(tok)
        allregs = lambda lo: [r for i in range(lo, len(ops)) for r in opregs(i)]
        if base.startswith('v_mfma') or base.startswith('v_smfmac'):
            self.kind = 'mfma'
            self.defs = opregs(0)
            self.uses = opregs(1) + opregs(2) + opregs(3)
            self.cregs = opregs(3)
            if '32x32x16' in base or '32x32x8' in base: self.passes = 8
            elif '16x16x32' in base or '16x16x16' in base: self.passes = 4
            else: self.passes = 16
        elif base.startswith('v_cmp'):
            self.kind = 'valu'
            self.defs = opregs(0) + (['exec'] if base.startswith('v_cmpx') else [])
            self.uses = allregs(1)
        elif base.startswith('v_'):
            self.kind = 'trans' if base in TRANS else 'valu'
            if base in ('v_add_co_u32', 'v_sub_co_u32', 'v_addc_co_u32', 'v_subb_co_u32', 'v_subrev_co_u32', 'v_mad_u64_u32'):
                self.defs = opregs(0) + opregs(1); self.uses = allregs(2)
            elif base.startswith('v_permlane') and 'swap' in base:
                self.defs = opregs(0) + opregs(1); self.uses = opregs(0) + opregs(1)
            elif base in ('v_fmac_f32', 'v_dot2c_f32_bf16', 'v_writelane_b32', 'v_fmac_f16'):
                self.defs = opregs(0); self.uses = opregs(0) + allregs(1)
            elif base == 'v_nop':
                pass
            else:
                self.defs = opregs(0); self.uses = allregs(1)
            if base == 'v_cndmask_b32' and len(ops) == 3:
                self.uses = self.uses + ['vcc']
            self.uses = self.uses + ['exec']
        elif base.startswith('ds_'):
            self.kind = 'ds'
            if base.startswith('ds_read') or base.startswith('ds_bpermute') or base.startswith('ds_swizzle') or base.startswith('ds_permute'):
                self.defs = opregs(0); self.uses = allregs(1)
            else:
                self.uses = allregs(0)
        elif base.startswith('buffer_') or base.startswith('global_') or base.startswith('flat_'):
            self.kind = 'vmem'
            if '_load' in base and ' lds' not in t:
                self.defs = opregs(0); self.uses = allregs(1)
            else:
                self.uses = allregs(0)
        elif base.startswith('s_'):
            self.kind = 'salu'
            if base in ('s_waitcnt', 's_barrier', 's_nop', 's_endpgm', 's_branch', 's_setprio', 's_sleep') or base.startswith('s_cbranch'):
                pass
            elif base.startswith('s_cmp'):
                self.uses = allregs(0); self.defs = ['scc']
            else:
                self.defs = opregs(0); self.uses = allregs(1)
    def waitstates(self):
        if self.is_label or self.is_raw: return 0
        if self.mn == 's_nop':
            return int(self.ops[0], 0) + 1
        return 1

def _overlap(a, b):
    return bool(set(a) & set(b))

def required(P, C):
    req = 0
    vdefP = [r for r in P.defs if r[0] in 'va']
    if P.kind in ('valu', 'trans'):
        if C.kind == 'mfma' and _overlap(vdefP, C.uses): req = max(req, 2)
        if P.kind == 'trans' and C.kind in ('valu',) and _overlap(vdefP, C.uses): req = max(req, 1)
        if C.mn.startswith('v_permlane') and _overlap(vdefP, C.uses): req = max(req, 2)
        if '_dpp' in C.mn or ' row_' in C.text or 'quad_perm' in C.text:
            if _overlap(vdefP, C.uses): req = max(req, 2)
        if C.mn.startswith('v_readfirstlane') or C.mn.startswith('v_readlane'):
            if _overlap(vdefP, C.uses): req = max(req, 1)
        sdef = [r for r in P.defs if r[0] == 's' or r == 'vcc']
        if sdef:
            if C.kind in ('valu', 'trans') and _overlap(sdef, C.uses): req = max(req, 2)
            if C.kind == 'vmem' and _overlap(sdef, C.uses): req = max(req, 5)
            if C.kind == 'mfma' and _overlap(sdef, C.uses): req = max(req, 2)
        if 'exec' in P.defs:
            if C.kind == 'mfma': req = max(req, 4)
            if C.kind in ('valu', 'trans'): req = max(req, 4)
    if P.kind == 'mfma':
        p = P.passes
        tbl_other = {2: 5, 4: 8, 8: 12, 16: 20}[p]
        tbl_cpart = {2: 4, 4: 6, 8: 10, 16: 18}[p]
        if C.kind == 'mfma':
            ab = C.uses[:len(C.uses) - len(C.cregs)]
            if _overlap(P.defs, ab): req = max(req, tbl_other)
            if _overlap(P.defs, C.cregs):
                if C.cregs == P.defs and C.passes == P.passes and p >= 4:
                    pass
                else:
                    req = max(req, tbl_cpart)
            elif _overlap(P.defs, C.defs):
                req = max(req, tbl_cpart)
        else:
            if _overlap(P.defs, C.uses) or _overlap(P.defs, C.defs): req = max(req, tbl_other)
            if C.kind in ('valu', 'trans') and _overlap(P.cregs, C.defs):
                req = max(req, {2: 1, 4: 3, 8: 7, 16: 15}[p])
    if P.kind == 'vmem' and ('store' in P.mn) and ('x3' in P.mn or 'x4' in P.mn):
        if _overlap(P.uses, C.defs) and C.kind in ('valu', 'trans', 'ds', 'vmem', 'mfma'):
            req = max(req, 2)
    if P.kind == 'salu' and 'm0' in P.defs and C.kind == 'vmem' and ' lds' in C.text:
        req = max(req, 1)
    return req

class Builder:
    def __init__(self):
        self.ins = []
    def __call__(self, text):
        for line in text.split('\n'):
            line = line.strip()
            if line:
                self.ins.append(Ins(line))
    def label(self, name):
        self.ins.append(Ins(name + ':'))
    def stamp(self, i):
        if not getattr(self, 'stamps', False): return
        self(f's_memtime s[90:91]')
        self('s_waitcnt lgkmcnt(0)')
        self(f's_mov_b32 s{70+i}, s90')
        self.nst = max(getattr(self, 'nst', 0), i + 1)
    def stamp_out(self):
        if not getattr(self, 'stamps', False): return
        self('v_cmp_eq_u32 vcc, 0, v0')
        self('s_and_saveexec_b64 s[88:89], vcc')
        self('s_add_u32 s86, s4, 0xc800000')
        self('s_addc_u32 s87, s5, 0')
        self('s_lshl_b32 s85, s2, 6')
        self('v_mov_b32 v1, s85')
        for i in range(self.nst):
            self(f'v_mov_b32 v2, s{70+i}')
            self(f'global_store_dword v1, v2, s[86:87] offset:{i*4}')
        self('s_mov_b64 exec, s[88:89]')
    def comment(self, c):
        self.ins.append(Ins('; ' + c))
    def fix_hazards(self, window=24):
        changed = True
        guard = 0
        while changed and guard < 50:
            guard += 1
            changed = False
            out = []
            for idx, C in enumerate(self.ins):
                if not (C.is_label or C.is_raw):
                    need = 0
                    dist = 0
                    for P in reversed(out[-window*2:]):
                        if P.is_label or P.is_raw: continue
                        r = required(P, C)
                        if r > dist: need = max(need, r - dist)
                        dist += P.waitstates()
                        if dist > window: break
                    if need > 0:
                        out.append(Ins(f's_nop {need-1}'))
                        changed = True
                out.append(C)
            self.ins = out
        labels = {}
        for i, x in enumerate(self.ins):
            if x.is_label: labels[x.text.split(';')[0].strip()[:-1]] = i
        i = 0
        while i < len(self.ins):
            x = self.ins[i]
            if x.mn.startswith('s_cbranch') or x.mn == 's_branch':
                tgt = x.ops[0]
                if tgt in labels and labels[tgt] < i:
                    tail = [y for y in self.ins[max(0, i - window):i + 1] if not (y.is_label or y.is_raw)]
                    head = [y for y in self.ins[labels[tgt]:labels[tgt] + 2 * window] if not (y.is_label or y.is_raw)]
                    need = 0
                    for ci, C in enumerate(head):
                        dist = sum(h.waitstates() for h in head[:ci])
                        if dist > window: break
                        d2 = dist
                        for P in reversed(tail):
                            r = required(P, C)
                            if r > d2: need = max(need, r - d2)
                            d2 += P.waitstates()
                    if need > 0:
                        self.ins.insert(i, Ins(f's_nop {need-1}'))
                        for k in labels:
                            if labels[k] >= i: labels[k] += 1
                        i += 1
            i += 1
    def text(self):
        return '\n'.join(('' if x.is_label else '    ') + x.text for x in self.ins) + '\n'
    def max_regs(self):
        mv = ma = ms = -1
        for x in self.ins:
            for r in x.defs + x.uses:
                if not r[1:].isdigit(): continue
                if r[0] == 'v': mv = max(mv, int(r[1:]))
                elif r[0] == 'a': ma = max(ma, int(r[1:]))
                elif r[0] == 's' and r[1:].isdigit(): ms = max(ms, int(r[1:]))
        return mv, ma, ms
```

```python
from asmlib import *
from gemm import KARG, WS, RA, emit_srd
import struct, math

def f2u(x):
    return struct.unpack('<I', struct.pack('<f', x))[0]

def gen_attn2(name):
    b = Builder()
    NCH = 8
    HSTG = 16384
    STG = 2 * HSTG
    NS = 4
    lds_total = NS * STG
    sQ, sO = 8, 12
    s_h, s_qt, s_tmp, s_c, s_wv, s_hf = 16, 17, 18, 22, 23, 26
    ra = RA(1)
    vt = [ra.alloc() for _ in range(6)]
    v_go = ra.alloc(); v_go2 = ra.alloc()
    v_kr = [ra.alloc() for _ in range(4)]
    v_vr = [ra.alloc() for _ in range(4)]
    stK = [ra.alloc(4, 4) for _ in range(2)]
    stV = [ra.alloc(4, 4) for _ in range(2)]
    qf = [ra.alloc(4, 4) for _ in range(2)]
    kf = [[ra.alloc(4, 4) for _ in range(2)] for _ in range(2)]
    vf = [ra.alloc(4, 4) for _ in range(2)]
    Sb = [ra.alloc(16, 4) for _ in range(2)]
    Oa = ra.alloc(16, 4)
    pf = ra.alloc(8, 4)
    v_m = ra.alloc(); v_mx = ra.alloc(); v_mx2 = ra.alloc()
    v_al = ra.alloc(2, 2)

    b.label(name)
    b('s_cmp_ge_u32 s2, 256')
    b(f's_cbranch_scc1 L_{name}_end')
    b(f's_load_dwordx2 s[4:5], s[0:1], {KARG["ws"]}')
    b(f's_and_b32 s{s_h}, s2, 7')
    b(f's_lshl_b32 s{s_h}, s{s_h}, 1')
    b(f's_bfe_u32 s{s_tmp}, s2, 0x10003')
    b(f's_add_u32 s{s_h}, s{s_h}, s{s_tmp}')
    b(f's_lshr_b32 s{s_tmp}, s2, 4')
    b(f'v_lshrrev_b32 v{vt[0]}, 6, v0')
    b(f'v_readfirstlane_b32 s{s_wv}, v{vt[0]}')
    b(f's_lshr_b32 s{s_hf}, s{s_wv}, 2')
    b(f's_and_b32 s{s_wv}, s{s_wv}, 3')
    b(f's_lshl_b32 s{s_qt}, s{s_tmp}, 2')
    b(f's_add_u32 s{s_qt}, s{s_qt}, s{s_wv}')
    b(f's_mov_b32 s{s_c}, 0x{f2u(28 ** -0.5 * math.log2(math.e)):x}')
    b('s_waitcnt lgkmcnt(0)')
    emit_srd(b, sQ, 4, WS['QKV'], 48 * 2048 * 64)
    emit_srd(b, sO, 4, WS['OB'], 2048 * 448 * 2)
    lane = vt[5]
    b(f'v_and_b32 v{lane}, 63, v0')
    b(f's_lshl_b32 s{s_tmp}, s{s_h}, 17')
    b(f's_lshl_b32 s{s_tmp+1}, s{s_qt}, 11')
    b(f's_add_u32 s{s_tmp}, s{s_tmp}, s{s_tmp+1}')
    b(f'v_lshlrev_b32 v{vt[0]}, 4, v{lane}')
    b(f'buffer_load_dwordx4 {V(qf[0],4)}, v{vt[0]}, s[{sQ}:{sQ+3}], s{s_tmp} offen')
    b(f'buffer_load_dwordx4 {V(qf[1],4)}, v{vt[0]}, s[{sQ}:{sQ+3}], s{s_tmp} offen offset:1024')
    t0, t1, t2 = vt[0], vt[1], vt[2]
    b(f'v_and_b32 v{t0}, 255, v0')
    b(f'v_lshlrev_b32 v{t0}, 4, v{t0}')
    b(f'v_lshrrev_b32 v{t1}, 8, v0')
    b(f'v_lshl_add_u32 v{v_go}, v{t1}, 16, v{t0}')
    b(f'v_add_u32 v{v_go2}, 4096, v{v_go}')
    b(f's_lshl_b32 s{s_tmp}, s{s_hf}, 14')
    b(f'v_lshlrev_b32 v{v_kr[0]}, 4, v{lane}')
    b(f'v_add_u32 v{v_kr[0]}, s{s_tmp}, v{v_kr[0]}')
    for sl in range(1, 4):
        b(f'v_add_u32 v{v_kr[sl]}, {sl*STG}, v{v_kr[0]}')
    b(f'v_bfe_u32 v{t0}, v{lane}, 5, 1')
    b(f'v_bfe_u32 v{t1}, v{lane}, 2, 2')
    b(f'v_lshl_add_u32 v{t0}, v{t0}, 2, v{t1}')
    b(f'v_lshlrev_b32 v{t0}, 6, v{t0}')
    b(f'v_bfe_u32 v{t1}, v{lane}, 4, 1')
    b(f'v_lshl_add_u32 v{t0}, v{t1}, 5, v{t0}')
    b(f'v_and_b32 v{t1}, 3, v{lane}')
    b(f'v_lshl_add_u32 v{t0}, v{t1}, 3, v{t0}')
    b(f'v_add_u32 v{t0}, s{s_tmp}, v{t0}')
    for sl in range(4):
        b(f'v_add_u32 v{v_vr[sl]}, {sl*STG + 8192}, v{t0}')
    b(f'v_lshlrev_b32 v{v_go2}, 4, v{lane}')
    b(f's_lshl_b32 s27, s{s_hf}, 16')
    b(f's_lshl_b32 s28, s{s_wv}, 10')
    b(f's_add_u32 s27, s27, s28')
    b(f's_lshl_b32 s29, s{s_hf}, 14')
    b(f's_add_u32 s29, s29, s28')
    s_k, s_v = 19, 20
    b(f's_add_u32 s{s_tmp}, s{s_h}, 16')
    b(f's_lshl_b32 s{s_k}, s{s_tmp}, 17')
    b(f's_add_u32 s{s_tmp}, s{s_h}, 32')
    b(f's_lshl_b32 s{s_v}, s{s_tmp}, 17')
    def issue_loads(slot):
        for (sreg, lo) in ((s_k, 0), (s_v, 8192)):
            for j in range(2):
                b(f's_add_u32 s30, s{sreg}, s27')
                if j: b(f's_add_u32 s30, s30, 4096')
                b(f's_add_u32 m0, s29, {slot*STG + lo + j*4096}')
                b(f'buffer_load_dwordx4 v{v_go2}, s[{sQ}:{sQ+3}], s30 offen lds')
        b(f's_add_u32 s{s_k}, s{s_k}, 8192')
        b(f's_add_u32 s{s_v}, s{s_v}, 8192')
    def read_k(buf, tt, ks):
        b(f'ds_read_b128 {V(kf[ks][0],4)}, v{v_kr[buf]} offset:{tt*2048}')
        b(f'ds_read_b128 {V(kf[ks][1],4)}, v{v_kr[buf]} offset:{tt*2048+1024}')
    def read_v(buf, tt):
        for u in range(2):
            for bb in range(2):
                b(f'ds_read_b64_tr_b16 {V(vf[u]+2*bb,2)}, v{v_vr[buf]} offset:{tt*2048 + (u*16+bb*8)*64}')
    def qk(sb, ks):
        b(f'v_mfma_f32_32x32x16_bf16 {V(Sb[sb],16)}, {V(kf[ks][0],4)}, {V(qf[0],4)}, 0')
        b(f'v_mfma_f32_32x32x16_bf16 {V(Sb[sb],16)}, {V(kf[ks][1],4)}, {V(qf[1],4)}, {V(Sb[sb],16)}')
    def softmax(sb):
        Sr = Sb[sb]
        b(f'v_max3_f32 v{v_mx}, v{Sr}, v{Sr+1}, v{Sr+2}')
        for i in range(3, 15, 2):
            b(f'v_max3_f32 v{v_mx}, v{v_mx}, v{Sr+i}, v{Sr+i+1}')
        b(f'v_max_f32 v{v_mx}, v{v_mx}, v{Sr+15}')
        b(f'v_mov_b32 v{v_mx2}, v{v_mx}')
        b(f'v_permlane32_swap_b32 v{v_mx}, v{v_mx2}')
        b(f'v_max_f32 v{v_mx}, v{v_mx}, v{v_mx2}')
        b(f'v_mul_f32 v{v_mx}, s{s_c}, v{v_mx}')
        b(f'v_max_f32 v{v_mx}, v{v_mx}, v{v_m}')
        b(f'v_sub_f32 v{v_al}, v{v_m}, v{v_mx}')
        b(f'v_exp_f32 v{v_al}, v{v_al}')
        b(f'v_mov_b32 v{v_m}, v{v_mx}')
        for i in range(16):
            b(f'v_fma_f32 v{Sr+i}, v{Sr+i}, s{s_c}, -v{v_m}')
            b(f'v_exp_f32 v{Sr+i}, v{Sr+i}')
        b(f'v_mov_b32 v{v_al+1}, v{v_al}')
        for i in range(8):
            b(f'v_cvt_pk_bf16_f32 v{pf+i}, v{Sr+2*i}, v{Sr+2*i+1}')
        for i in range(8):
            b(f'v_pk_mul_f32 {V(Oa+2*i,2)}, {V(Oa+2*i,2)}, {V(v_al,2)}')
    def pv():
        b(f'v_mfma_f32_32x32x16_bf16 {V(Oa,16)}, {V(vf[0],4)}, {V(pf,4)}, {V(Oa,16)}')
        b(f'v_mfma_f32_32x32x16_bf16 {V(Oa,16)}, {V(vf[1],4)}, {V(pf+4,4)}, {V(Oa,16)}')

    b(f'v_mov_b32 v{v_m}, 0xf149f2ca')
    for i in range(16):
        b(f'v_mov_b32 v{Oa+i}, 0')
    for sl in range(3):
        issue_loads(sl)
    b(f's_mov_b32 s21, 0')
    b.label(f'L_{name}_loop')
    for buf in range(4):
        b('s_waitcnt vmcnt(8)')
        b('s_barrier')
        issue_loads((buf + 3) % 4)
        read_k(buf, 0, 0)
        read_k(buf, 1, 1)
        b('s_waitcnt lgkmcnt(2)')
        qk(0, 0)
        for tt in range(4):
            sb = tt & 1
            read_v(buf, tt)
            if tt < 3:
                b('s_waitcnt lgkmcnt(4)')
                qk(sb ^ 1, (tt + 1) & 1)
            if tt < 2:
                read_k(buf, tt + 2, tt & 1)
            softmax(sb)
            b(f's_waitcnt lgkmcnt({2 if tt < 2 else 0})')
            pv()
    b(f's_add_u32 s21, s21, 4')
    b(f's_cmp_lt_u32 s21, {NCH}')
    b(f's_cbranch_scc1 L_{name}_loop')
    b('s_waitcnt vmcnt(0)')
    b('s_barrier')
    v_ma = vt[0]
    b(f'v_lshlrev_b32 v{v_ma}, 2, v{lane}')
    b(f's_mul_i32 s{s_tmp}, s{s_wv}, {17*256}')
    b(f'v_add_u32 v{v_ma}, s{s_tmp}, v{v_ma}')
    b(f's_cmp_eq_u32 s{s_hf}, 0')
    b(f's_cbranch_scc1 L_{name}_lo')
    for i in range(16):
        b(f'ds_write_b32 v{v_ma}, v{Oa+i} offset:{i*256}')
    b(f'ds_write_b32 v{v_ma}, v{v_m} offset:{16*256}')
    b('s_waitcnt lgkmcnt(0)')
    b('s_barrier')
    b(f's_branch L_{name}_end')
    b.label(f'L_{name}_lo')
    b('s_barrier')
    O2 = Sb[0]
    for i in range(16):
        b(f'ds_read_b32 v{O2+i}, v{v_ma} offset:{i*256}')
    b(f'ds_read_b32 v{v_mx}, v{v_ma} offset:{16*256}')
    b('s_waitcnt lgkmcnt(0)')
    b(f'v_max_f32 v{v_mx2}, v{v_mx}, v{v_m}')
    b(f'v_sub_f32 v{v_m}, v{v_m}, v{v_mx2}')
    b(f'v_sub_f32 v{v_mx}, v{v_mx}, v{v_mx2}')
    b(f'v_exp_f32 v{v_m}, v{v_m}')
    b(f'v_exp_f32 v{v_mx}, v{v_mx}')
    for i in range(16):
        b(f'v_mul_f32 v{Oa+i}, v{v_m}, v{Oa+i}')
        b(f'v_fmac_f32 v{Oa+i}, v{v_mx}, v{O2+i}')
    b(f'v_mov_b32 v{v_mx}, v{Oa+12}')
    b(f'v_mov_b32 v{v_mx2}, v{Oa+12}')
    b(f'v_permlane32_swap_b32 v{v_mx}, v{v_mx2}')
    b(f'v_rcp_f32 v{v_al}, v{v_mx2}')
    t0, t1 = vt[0], vt[1]
    b(f'v_and_b32 v{t0}, 31, v{lane}')
    b(f's_lshl_b32 s{s_tmp}, s{s_qt}, 5')
    b(f'v_add_u32 v{t0}, s{s_tmp}, v{t0}')
    b(f'v_mul_u32_u24 v{t0}, 896, v{t0}')
    b(f'v_bfe_u32 v{t1}, v{lane}, 5, 1')
    b(f'v_lshl_add_u32 v{t0}, v{t1}, 3, v{t0}')
    b(f's_mul_i32 s{s_tmp}, s{s_h}, 56')
    b(f'v_add_u32 v{t0}, s{s_tmp}, v{t0}')
    for bb in range(4):
        for r in range(4):
            b(f'v_mul_f32 v{Oa+4*bb+r}, v{v_al}, v{Oa+4*bb+r}')
        b(f'v_cvt_pk_bf16_f32 v{pf}, v{Oa+4*bb}, v{Oa+4*bb+1}')
        b(f'v_cvt_pk_bf16_f32 v{pf+1}, v{Oa+4*bb+2}, v{Oa+4*bb+3}')
        if bb == 3:
            b(f'v_cmp_gt_u32 vcc, 32, v{lane}')
            b(f's_and_saveexec_b64 s[24:25], vcc')
        b(f'buffer_store_dwordx2 {V(pf,2)}, v{t0}, s[{sO}:{sO+3}], 0 offen offset:{bb*16}')
        if bb == 3:
            b(f's_mov_b64 exec, s[24:25]')
    b.label(f'L_{name}_end')
    b('s_endpgm')
    b.fix_hazards()
    mv, ma, ms = b.max_regs()
    return dict(name=name, text=b.text(), vgpr=mv + 1, agpr=0, sgpr=40, lds=lds_total, nwg=256, threads=512)
```

```python
from asmlib import *
from gemm import KARG, WS, M, RA, log2, emit_srd
import struct

def f2u(x):
    return struct.unpack('<I', struct.pack('<f', x))[0]

def gen_gemm2(name, *, stamps=False, N, K, BM, BN, BK, NS, a_src, w_srcs, ln, epi, out_dst=None, res_src=None, ldo=None):
    b = Builder()
    b.stamps = stamps
    nW = len(w_srcs)
    BNq = BN // nW
    NT = N // BNq
    MT = M // BM
    nwg = NT * MT
    nit = K // BK
    KS = BK // 32
    WM = BM // 2; WN = BN // 2
    a_ = WM // 16
    b_ = WN // 16
    bq = b_ // nW
    assert BK == 64
    rowA = 128
    rowB = 128 if BNq * 2 <= 128 else 256
    assert BNq * 2 <= 256
    sizeA = BM * rowA
    sizeB = BK * rowB
    SLOT = sizeA + nW * sizeB
    CSUM = NS * SLOT
    lds_total = CSUM + 4 * 512
    nAi = BM * 8 // 64
    nBi = BK * (rowB // 16) // 64
    assert nAi % 4 == 0 and nBi % 4 == 0
    lda2 = K * 2; ldb2 = N * 2

    sA, sB = 8, [12, 16]
    sO, sR = 20, 24
    s_tm, s_tn = 28, 29
    s_tmp = 44
    s_ones, s_wv = 50, 51
    s_abase, s_bbase, s_w1k, s_x = 52, 53, 54, 55

    ra = RA(1)
    ra.alloc(1)
    vt = [ra.alloc() for _ in range(8)]
    v_dA = ra.alloc()
    v_dB = [ra.alloc() for _ in range(nW)]
    vA_rd = [[ra.alloc() for _ in range(KS)] for _ in range(NS)]
    vB_rd = [[ra.alloc() for _ in range(b_)] for _ in range(NS)]
    xf = [[ra.alloc(4, 4) for _ in range(a_)] for _ in range(2)]
    wf = [[ra.alloc(4, 4) for _ in range(b_)] for _ in range(2)]
    if ln:
        v_rs = [ra.alloc() for _ in range(a_)]
        v_rq = [ra.alloc() for _ in range(a_)]
        v_cs = [ra.alloc() for _ in range(b_)]
        v_ones = ra.alloc()
    if epi == 'resid':
        v_res = [[ra.alloc(2, 2) for _ in range(b_)] for _ in range(a_)]
    acc = lambda ja, jb: A((ja * b_ + jb) * 4, 4)

    b.label(name)
    b(f's_cmp_ge_u32 s2, {nwg}')
    b(f's_cbranch_scc1 L_{name}_end')
    b.stamp(0)
    b(f's_load_dwordx2 s[4:5], s[0:1], {KARG["ws"]}')
    if a_src[0] == 'karg':
        b(f's_load_dwordx2 s[6:7], s[0:1], {KARG[a_src[1]]}')
    b(f's_load_dwordx2 s[34:35], s[0:1], {KARG[w_srcs[0]]}')
    if nW > 1:
        b(f's_load_dwordx2 s[36:37], s[0:1], {KARG[w_srcs[1]]}')
    if out_dst and out_dst[0] == 'karg':
        b(f's_load_dwordx2 s[38:39], s[0:1], {KARG[out_dst[1]]}')
    if res_src and res_src[0] == 'karg':
        b(f's_load_dwordx2 s[40:41], s[0:1], {KARG[res_src[1]]}')
    magic = (1 << 32) // NT + 1
    b(f's_lshr_b32 s{s_tmp+1}, s2, 3')
    b(f's_mov_b32 s{s_tmp}, 0x{magic:x}')
    b(f's_mul_hi_u32 s{s_tm}, s{s_tmp+1}, s{s_tmp}')
    b(f's_mul_i32 s{s_tmp}, s{s_tm}, {NT}')
    b(f's_sub_u32 s{s_tn}, s{s_tmp+1}, s{s_tmp}')
    b(f's_and_b32 s{s_tmp}, s2, 7')
    b(f's_mul_i32 s{s_tmp}, s{s_tmp}, {MT // 8}')
    b(f's_add_u32 s{s_tm}, s{s_tm}, s{s_tmp}')
    b(f's_mov_b32 s{s_ones}, 0x3f803f80')
    b(f'v_lshrrev_b32 v{vt[0]}, 6, v0')
    b(f'v_readfirstlane_b32 s{s_wv}, v{vt[0]}')
    lane = vt[7]
    b(f'v_and_b32 v{lane}, 63, v0')
    t0, t1, t2, t3 = vt[0], vt[1], vt[2], vt[3]
    b(f's_and_b32 s{s_tmp}, s{s_wv}, 1')
    b(f's_lshl_b32 s{s_tmp}, s{s_tmp}, 2')
    b(f'v_lshrrev_b32 v{t0}, 4, v{lane}')
    b(f'v_add_u32 v{t0}, s{s_tmp}, v{t0}')
    b(f'v_and_b32 v{t0}, 7, v{t0}')
    b(f'v_and_b32 v{t1}, 7, v{lane}')
    b(f'v_xor_b32 v{t0}, v{t0}, v{t1}')
    b(f'v_lshrrev_b32 v{t1}, 3, v{lane}')
    b(f'v_mul_u32_u24 v{t1}, {lda2}, v{t1}')
    b(f'v_lshl_add_u32 v{v_dA}, v{t0}, 4, v{t1}')
    if rowB == 256:
        b(f's_lshr_b32 s{s_tmp}, s{s_wv}, 1')
        b(f's_lshl_b32 s{s_tmp}, s{s_tmp}, 2')
        b(f'v_lshrrev_b32 v{t0}, 4, v{lane}')
        b(f'v_or_b32 v{t1}, s{s_tmp}, v{t0}')
        b(f'v_bfe_u32 v{t2}, v{lane}, 1, 3')
        b(f'v_xor_b32 v{t1}, v{t1}, v{t2}')
        if BNq // 16 < 8:
            b(f'v_cmp_gt_u32 vcc, {BNq // 16}, v{t1}')
            b(f'v_cndmask_b32 v{t1}, 0, v{t1}, vcc')
    else:
        b(f's_and_b32 s{s_tmp}, s{s_wv}, 1')
        b(f's_lshl_b32 s{s_tmp}, s{s_tmp}, 1')
        b(f'v_lshrrev_b32 v{t0}, 3, v{lane}')
        b(f'v_bfe_u32 v{t1}, v{lane}, 4, 1')
        b(f'v_or_b32 v{t1}, s{s_tmp}, v{t1}')
        b(f'v_bfe_u32 v{t2}, v{lane}, 1, 2')
        b(f'v_xor_b32 v{t1}, v{t1}, v{t2}')
    b(f'v_and_b32 v{t2}, 1, v{lane}')
    b(f'v_lshl_add_u32 v{t1}, v{t1}, 1, v{t2}')
    b(f'v_mul_u32_u24 v{t0}, {ldb2}, v{t0}')
    b(f'v_lshl_add_u32 v{t0}, v{t1}, 4, v{t0}')
    for q in range(nW):
        b(f'v_mov_b32 v{v_dB[q]}, v{t0}')
    rows_per_bi = 64 // (rowB // 16)
    b('s_waitcnt lgkmcnt(0)')
    if a_src[0] == 'karg': emit_srd(b, sA, 6, 0, M * K * 2)
    else: emit_srd(b, sA, 4, a_src[1], M * K * 2)
    emit_srd(b, sB[0], 34, 0, K * N * 2)
    if nW > 1: emit_srd(b, sB[1], 36, 0, K * N * 2)
    b(f's_mul_i32 s{s_abase}, s{s_tm}, {BM * lda2}')
    b(f's_mul_i32 s{s_tmp}, s{s_wv}, {8 * lda2}')
    b(f's_add_u32 s{s_abase}, s{s_abase}, s{s_tmp}')
    b(f's_mul_i32 s{s_bbase}, s{s_tn}, {BNq * 2}')
    b(f's_mul_i32 s{s_tmp}, s{s_wv}, {rows_per_bi * ldb2}')
    b(f's_add_u32 s{s_bbase}, s{s_bbase}, s{s_tmp}')
    b(f's_lshl_b32 s{s_w1k}, s{s_wv}, 10')

    def issue_dma(it):
        slot = it % NS
        for j in range(nAi // 4):
            b(f's_add_u32 s{s_x}, s{s_abase}, {j * 32 * lda2 + it * BK * 2}')
            b(f's_add_u32 m0, s{s_w1k}, {slot * SLOT + j * 4096}')
            b(f'buffer_load_dwordx4 v{v_dA}, s[{sA}:{sA+3}], s{s_x} offen lds')
        for q in range(nW):
            for j in range(nBi // 4):
                b(f's_add_u32 s{s_x}, s{s_bbase}, {(j * 4 * rows_per_bi + it * BK) * ldb2}')
                b(f's_add_u32 m0, s{s_w1k}, {slot * SLOT + sizeA + q * sizeB + j * 4096}')
                b(f'buffer_load_dwordx4 v{v_dB[q]}, s[{sB[q]}:{sB[q]+3}], s{s_x} offen lds')
    ndma = nAi // 4 + nW * nBi // 4
    for it in range(min(NS - 1, nit)):
        issue_dma(it)

    b.stamp(1)
    if epi == 'qkv':
        emit_srd(b, sO, 4, WS['QKV'], 48 * M * 64)
    else:
        if out_dst[0] == 'karg': emit_srd(b, sO, 38, 0, M * ldo * 2)
        else: emit_srd(b, sO, 4, out_dst[1], M * ldo * 2)
    if res_src:
        if res_src[0] == 'karg': emit_srd(b, sR, 40, 0, M * ldo * 2)
        else: emit_srd(b, sR, 4, res_src[1], M * ldo * 2)
    li, lg = vt[4], vt[5]
    b(f'v_and_b32 v{li}, 15, v0')
    b(f'v_bfe_u32 v{lg}, v0, 4, 2')
    vrow, vcol = ra.alloc(), ra.alloc()
    b(f's_lshr_b32 s{s_tmp}, s{s_wv}, 1')
    b(f's_mul_i32 s{s_tmp}, s{s_tmp}, {WM}')
    b(f's_mul_i32 s{s_tmp+1}, s{s_tm}, {BM}')
    b(f's_add_u32 s{s_tmp}, s{s_tmp}, s{s_tmp+1}')
    b(f'v_add_u32 v{vrow}, s{s_tmp}, v{li}')
    b(f's_and_b32 s{s_tmp}, s{s_wv}, 1')
    b(f's_mul_i32 s{s_tmp}, s{s_tmp}, {bq*16}')
    b(f's_mul_i32 s{s_tmp+1}, s{s_tn}, {BNq}')
    b(f's_add_u32 s{s_tmp}, s{s_tmp}, s{s_tmp+1}')
    b(f'v_lshlrev_b32 v{vcol}, 2, v{lg}')
    b(f'v_add_u32 v{vcol}, s{s_tmp}, v{vcol}')
    if epi in ('resid', 'swiglu'):
        v_oaddr = ra.alloc()
        b(f'v_mul_u32_u24 v{v_oaddr}, {ldo*2}, v{vrow}')
        b(f'v_lshl_add_u32 v{v_oaddr}, v{vcol}, 1, v{v_oaddr}')
        v_oa = [ra.alloc() for _ in range(a_)]
        for ja in range(a_):
            b(f'v_add_u32 v{v_oa[ja]}, {ja*16*ldo*2}, v{v_oaddr}')
    if epi == 'resid':
        for ja in range(a_):
            for jb in range(b_):
                b(f'buffer_load_dwordx2 {V(v_res[ja][jb],2)}, v{v_oa[ja]}, s[{sR}:{sR+3}], 0 offen offset:{jb*32}')
    b(f's_lshr_b32 s{s_tmp}, s{s_wv}, 1')
    b(f's_mul_i32 s{s_tmp}, s{s_tmp}, {WM * rowA}')
    b(f'v_bfe_u32 v{t0}, v{li}, 1, 3')
    b(f'v_mul_u32_u24 v{t1}, {rowA}, v{li}')
    b(f'v_add_u32 v{t1}, s{s_tmp}, v{t1}')
    for s in range(KS):
        b(f'v_add_u32 v{t2}, {4 * s}, v{lg}')
        b(f'v_xor_b32 v{t2}, v{t2}, v{t0}')
        b(f'v_lshl_add_u32 v{t2}, v{t2}, 4, v{t1}')
        for sl in range(NS):
            b(f'v_add_u32 v{vA_rd[sl][s]}, {sl * SLOT}, v{t2}')
    b(f'v_lshrrev_b32 v{t0}, 2, v{li}')
    b(f'v_lshl_add_u32 v{t1}, v{lg}, 3, v{t0}')
    b(f'v_mul_u32_u24 v{t1}, {rowB}, v{t1}')
    b(f'v_and_b32 v{t2}, 3, v{li}')
    b(f'v_lshl_add_u32 v{t1}, v{t2}, 3, v{t1}')
    if rowB == 256:
        b(f'v_and_b32 v{t2}, 1, v{lg}')
        b(f'v_lshl_or_b32 v{t0}, v{t2}, 2, v{t0}')
    else:
        b(f'v_bfe_u32 v{t0}, v{li}, 3, 1')
        b(f'v_and_b32 v{t2}, 1, v{lg}')
        b(f'v_lshl_or_b32 v{t0}, v{t2}, 1, v{t0}')
    b(f's_and_b32 s{s_tmp}, s{s_wv}, 1')
    for jb in range(b_):
        q = jb // bq; jj = jb % bq
        b(f's_mul_i32 s{s_tmp+1}, s{s_tmp}, {bq}')
        b(f's_add_u32 s{s_tmp+1}, s{s_tmp+1}, {jj}')
        b(f'v_xor_b32 v{t2}, s{s_tmp+1}, v{t0}')
        b(f'v_lshl_add_u32 v{t2}, v{t2}, 5, v{t1}')
        for sl in range(NS):
            b(f'v_add_u32 v{vB_rd[sl][jb]}, {sl * SLOT + sizeA + q * sizeB}, v{t2}')
    if ln:
        b(f'v_mov_b32 v{v_ones}, s{s_ones}')
        for ja in range(a_):
            b(f'v_mov_b32 v{v_rs[ja]}, 0'); b(f'v_mov_b32 v{v_rq[ja]}, 0')
        for jb in range(b_):
            b(f'v_mov_b32 v{v_cs[jb]}, 0')

    def read_frags(slot, s, fs):
        for ja in range(a_):
            b(f'ds_read_b128 {V(xf[fs][ja],4)}, v{vA_rd[slot][s]} offset:{ja*16*rowA}')
        for jb in range(b_):
            o = s * 32 * rowB
            b(f'ds_read_b64_tr_b16 {V(wf[fs][jb],2)}, v{vB_rd[slot][jb]} offset:{o}')
            b(f'ds_read_b64_tr_b16 {V(wf[fs][jb]+2,2)}, v{vB_rd[slot][jb]} offset:{o + 4*rowB}')
    nrd = a_ + 2 * b_
    def mfmas(fs, first):
        ml = []
        for ja in range(a_):
            for jb in range(b_):
                c = '0' if first else acc(ja, jb)
                ml.append(f'v_mfma_f32_16x16x32_bf16 {acc(ja,jb)}, {V(wf[fs][jb],4)}, {V(xf[fs][ja],4)}, {c}')
        dl = []
        if ln:
            for d in range(4):
                for ja in range(a_):
                    dl.append(f'v_dot2_f32_bf16 v{v_rs[ja]}, v{xf[fs][ja]+d}, v{v_ones}, v{v_rs[ja]}')
                    dl.append(f'v_dot2_f32_bf16 v{v_rq[ja]}, v{xf[fs][ja]+d}, v{xf[fs][ja]+d}, v{v_rq[ja]}')
                for jb in range(b_):
                    dl.append(f'v_dot2_f32_bf16 v{v_cs[jb]}, v{wf[fs][jb]+d}, v{v_ones}, v{v_cs[jb]}')
        for m_ in ml:
            b(m_)
        for x in dl:
            b(x)

    nres = a_ * b_ if epi == 'resid' else 0
    for it in range(nit):
        slot = it % NS
        later = min(NS - 2, nit - 1 - it)
        outstanding_after = later * ndma + (nres if it < NS - 1 else 0)
        b(f's_waitcnt vmcnt({min(outstanding_after, 63)})')
        b('s_barrier')
        if it == 0: b.stamp(3)
        if it + NS - 1 < nit:
            issue_dma(it + NS - 1)
        for s in range(KS):
            read_frags(slot, s, s & 1)
        for s in range(KS):
            rem = (KS - 1 - s) * nrd
            b(f's_waitcnt lgkmcnt({min(rem,15)})')
            mfmas(s & 1, first=(it == 0 and s == 0))

    b.stamp(4)
    ep = xf[0][0]; ep2 = xf[1][0]; ep3 = wf[0][0]
    if ln:
        for vv in v_rs + v_rq + v_cs:
            b(f'v_mov_b32 v{t0}, v{vv}')
            b(f'v_permlane32_swap_b32 v{vv}, v{t0}')
            b(f'v_add_f32 v{vv}, v{vv}, v{t0}')
            b(f'v_mov_b32 v{t0}, v{vv}')
            b(f'v_permlane16_swap_b32 v{vv}, v{t0}')
            b(f'v_add_f32 v{vv}, v{vv}, v{t0}')
        b(f's_mov_b32 s{s_tmp}, 0x{f2u(1.0/K):x}')
        for ja in range(a_):
            b(f'v_mul_f32 v{v_rs[ja]}, s{s_tmp}, v{v_rs[ja]}')
            b(f'v_mul_f32 v{v_rq[ja]}, s{s_tmp}, v{v_rq[ja]}')
            b(f'v_fma_f32 v{v_rq[ja]}, -v{v_rs[ja]}, v{v_rs[ja]}, v{v_rq[ja]}')
            b(f'v_max_f32 v{v_rq[ja]}, 0, v{v_rq[ja]}')
            b(f'v_add_f32 v{v_rq[ja]}, 0x3727c5ac, v{v_rq[ja]}')
            b(f'v_rsq_f32 v{v_rq[ja]}, v{v_rq[ja]}')
        b(f's_lshl_b32 s{s_tmp}, s{s_wv}, 9')
        b(f'v_lshlrev_b32 v{t0}, 2, v{li}')
        b(f'v_add_u32 v{t0}, s{s_tmp}, v{t0}')
        b(f'v_add_u32 v{t0}, {CSUM}, v{t0}')
        b(f'v_lshlrev_b32 v{t1}, 4, v{lg}')
        b(f'v_add_u32 v{t1}, s{s_tmp}, v{t1}')
        b(f'v_add_u32 v{t1}, {CSUM}, v{t1}')
        vcsr = [wf[1][jb] for jb in range(b_)]
        for jb0 in range(0, b_, 8):
            for jb in range(jb0, min(b_, jb0 + 8)):
                b(f'ds_write_b32 v{t0}, v{v_cs[jb]} offset:{(jb-jb0)*64}')
            b('s_waitcnt lgkmcnt(0)')
            for jb in range(jb0, min(b_, jb0 + 8)):
                b(f'ds_read_b128 {V(vcsr[jb],4)}, v{t1} offset:{(jb-jb0)*64}')
            b('s_waitcnt lgkmcnt(0)')
    def load_acc(dst, ja, jb):
        for r in range(4):
            b(f'v_accvgpr_read_b32 v{dst+r}, a{(ja*b_+jb)*4+r}')
    def ln_fix(dst, ja, jb):
        for r in range(4):
            b(f'v_fma_f32 v{dst+r}, -v{v_rs[ja]}, v{vcsr[jb]+r}, v{dst+r}')
            b(f'v_mul_f32 v{dst+r}, v{v_rq[ja]}, v{dst+r}')
    if epi == 'qkv':
        v_one_bf = ra.alloc()
        b(f'v_mov_b32 v{v_one_bf}, 0x3f80')
        colp = [ra.alloc() for _ in range(b_)]
        isv = [ra.alloc() for _ in range(b_)]
        d24 = [ra.alloc() for _ in range(b_)]
        for jb in range(b_):
            b(f'v_add_u32 v{t0}, {jb*16}, v{vcol}')
            b(f'v_mul_u32_u24 v{t1}, 2341, v{t0}')
            b(f'v_lshrrev_b32 v{t1}, 16, v{t1}')
            b(f'v_mul_u32_u24 v{t2}, 28, v{t1}')
            b(f'v_sub_u32 v{t2}, v{t0}, v{t2}')
            b(f'v_mov_b32 v{d24[jb]}, v{t2}')
            b(f'v_lshlrev_b32 v{colp[jb]}, 17, v{t1}')
            b(f'v_lshrrev_b32 v{t3}, 3, v{t2}')
            b(f'v_lshlrev_b32 v{t3}, 9, v{t3}')
            b(f'v_and_b32 v{t0}, 7, v{t2}')
            b(f'v_lshl_add_u32 v{t3}, v{t0}, 1, v{t3}')
            b(f'v_lshlrev_b32 v{t0}, 1, v{t2}')
            b(f'v_cmp_lt_u32 vcc, 31, v{t1}')
            b(f'v_cndmask_b32 v{t3}, v{t3}, v{t0}, vcc')
            b(f'v_add_u32 v{colp[jb]}, v{colp[jb]}, v{t3}')
            b(f'v_cndmask_b32 v{isv[jb]}, 0, 1, vcc')
        rqk, rv = ra.alloc(), ra.alloc()
        for ja in range(a_):
            b(f'v_add_u32 v{t0}, {ja*16}, v{vrow}')
            b(f'v_lshrrev_b32 v{t3}, 5, v{t0}')
            b(f'v_lshlrev_b32 v{rqk}, 11, v{t3}')
            b(f'v_and_b32 v{t3}, 31, v{t0}')
            b(f'v_lshl_add_u32 v{rqk}, v{t3}, 4, v{rqk}')
            b(f'v_lshlrev_b32 v{rv}, 6, v{t0}')
            for jb in range(b_):
                load_acc(ep, ja, jb)
                ln_fix(ep, ja, jb)
                b(f'v_cvt_pk_bf16_f32 v{ep2}, v{ep}, v{ep+1}')
                b(f'v_cvt_pk_bf16_f32 v{ep2+1}, v{ep+2}, v{ep+3}')
                b(f'v_cmp_eq_u32 vcc, 1, v{isv[jb]}')
                b(f'v_cndmask_b32 v{t1}, v{rqk}, v{rv}, vcc')
                b(f'v_add_u32 v{t1}, v{t1}, v{colp[jb]}')
                b(f'buffer_store_dwordx2 {V(ep2,2)}, v{t1}, s[{sO}:{sO+3}], 0 offen')
                b(f'v_cndmask_b32 v{ep3}, 0, v{v_one_bf}, vcc')
                b(f'v_mov_b32 v{ep3+1}, 0')
                b(f'v_cmp_eq_u32 vcc, 24, v{d24[jb]}')
                b(f's_and_saveexec_b64 s[42:43], vcc')
                b(f'buffer_store_dwordx2 {V(ep3,2)}, v{t1}, s[{sO}:{sO+3}], 0 offen offset:8')
                b(f's_mov_b64 exec, s[42:43]')
    elif epi == 'resid':
        b('s_waitcnt vmcnt(0)')
        for ja in range(a_):
            for jb in range(b_):
                load_acc(ep, ja, jb)
                rr = v_res[ja][jb]
                b(f'v_lshlrev_b32 v{ep2}, 16, v{rr}')
                b(f'v_and_b32 v{ep2+1}, 0xffff0000, v{rr}')
                b(f'v_lshlrev_b32 v{ep2+2}, 16, v{rr+1}')
                b(f'v_and_b32 v{ep2+3}, 0xffff0000, v{rr+1}')
                for r in range(4):
                    b(f'v_add_f32 v{ep+r}, v{ep+r}, v{ep2+r}')
                b(f'v_cvt_pk_bf16_f32 v{ep2}, v{ep}, v{ep+1}')
                b(f'v_cvt_pk_bf16_f32 v{ep2+1}, v{ep+2}, v{ep+3}')
                b(f'buffer_store_dwordx2 {V(ep2,2)}, v{v_oa[ja]}, s[{sO}:{sO+3}], 0 offen offset:{jb*32}')
    elif epi == 'swiglu':
        for ja in range(a_):
            for jj in range(bq):
                load_acc(ep, ja, jj); ln_fix(ep, ja, jj)
                load_acc(ep3, ja, jj + bq); ln_fix(ep3, ja, jj + bq)
                for r in range(4):
                    b(f'v_mul_f32 v{ep2}, 0xbfb8aa3b, v{ep+r}')
                    b(f'v_exp_f32 v{ep2}, v{ep2}')
                    b(f'v_add_f32 v{ep2}, 1.0, v{ep2}')
                    b(f'v_rcp_f32 v{ep2}, v{ep2}')
                    b(f'v_mul_f32 v{ep+r}, v{ep+r}, v{ep3+r}')
                    b(f'v_mul_f32 v{ep+r}, v{ep+r}, v{ep2}')
                b(f'v_cvt_pk_bf16_f32 v{ep2}, v{ep}, v{ep+1}')
                b(f'v_cvt_pk_bf16_f32 v{ep2+1}, v{ep+2}, v{ep+3}')
                b(f'buffer_store_dwordx2 {V(ep2,2)}, v{v_oa[ja]}, s[{sO}:{sO+3}], 0 offen offset:{jj*32}')
    b.stamp(5)
    b.stamp_out()
    b.label(f'L_{name}_end')
    b('s_endpgm')
    b.fix_hazards()
    mv, ma, ms = b.max_regs()
    return dict(name=name, text=b.text(), vgpr=mv + 1, agpr=ma + 1, sgpr=max(ms + 1, 92), lds=lds_total, nwg=nwg)
```

```python
import sys
from gemm import *
from attn import gen_attn
from attn2 import gen_attn2
from gemm2 import gen_gemm2

HEADER = """; Kernarg layout for this problem (80 bytes, ptrs only, base s[0:1]):
;   offset   8: d_in[1] A_wqkv  shape=(448, 1344) dtype=bfloat16
"""

def assemble(kernels, launches, path):
    kd = {k['name']: k for k in kernels}
    s = HEADER
    for n in launches:
        k = kd[n]
        s += f"; @launch kernel={n} grid=({k['nwg']},1,1) block=({k.get('threads',256)},1,1) lds={k['lds']}\n"
    s += '.amdgcn_target "amdgcn-amd-amdhsa--gfx950"\n.text\n'
    for k in kernels:
        s += f".globl {k['name']}\n.p2align 8\n.type {k['name']},@function\n"
        s += k['text']
    s += '.section .rodata,"a"\n'
    for k in kernels:
        acc_off = (k['vgpr'] + 3) // 4 * 4
        nfv = acc_off + k['agpr'] if k['agpr'] else k['vgpr']
        s += f""".p2align 6
.amdhsa_kernel {k['name']}
  .amdhsa_next_free_vgpr {nfv}
  .amdhsa_next_free_sgpr {k['sgpr']}
  .amdhsa_accum_offset {acc_off}
  .amdhsa_group_segment_fixed_size 0
  .amdhsa_kernarg_size 80
  .amdhsa_user_sgpr_count 2
  .amdhsa_user_sgpr_kernarg_segment_ptr 1
  .amdhsa_system_sgpr_workgroup_id_x 1
.end_amdhsa_kernel
"""
    open(path, 'w').write(s)

if __name__ == "__main__":
    which = sys.argv[1] if len(sys.argv) > 1 else 'qkv'
    if which == 'gemms':
        ks = [
            gen_gemm('wo0_kernel', N=448, K=448, BM=64, BN=64, BK=64, a_src=('ws', WS['OB']), w_srcs=['wo'], ln=False, epi='resid', out_dst=('ws', WS['X1']), res_src=('karg','A_x'), ldo=448),
            gen_gemm('ffn1_0_kernel', N=1792, K=448, BM=128, BN=256, BK=64, a_src=('ws', WS['X1']), w_srcs=['w1','w3'], ln=True, epi='swiglu', out_dst=('ws', WS['HB']), ldo=1792),
            gen_gemm('ffn2_0_kernel', N=448, K=1792, BM=64, BN=64, BK=64, a_src=('ws', WS['HB']), w_srcs=['w2'], ln=False, epi='resid', out_dst=('ws', WS['X2']), res_src=('ws', WS['X1']), ldo=448),
        ]
        for k in ks: print(k['name'], k['vgpr'], k['agpr'], k['lds'], k['nwg'], len(k['text'].split('\n')))
        assemble(ks, [k['name'] for k in ks], 'test_gemms.s')
    if which == 'full':
        ks = []
        for L in range(2):
            xin = ('karg', 'A_x') if L == 0 else ('ws', WS['X2'])
            xout = ('ws', WS['X2']) if L == 0 else ('karg', 'out')
            ks.append(gen_gemm(f'qkv{L}_kernel', N=1344, K=448, BM=128, BN=96, BK=64, a_src=xin, w_srcs=['wqkv'], ln=True, epi='qkv'))
            if L == 0: ks.append(gen_attn('attn_kernel'))
            ks.append(gen_gemm(f'wo{L}_kernel', N=448, K=448, BM=64, BN=64, BK=64, a_src=('ws', WS['OB']), w_srcs=['wo'], ln=False, epi='resid', out_dst=('ws', WS['X1']), res_src=xin, ldo=448))
            if L == 0:
                ks.append(gen_gemm('ffn1_kernel', N=1792, K=448, BM=128, BN=256, BK=64, a_src=('ws', WS['X1']), w_srcs=['w1','w3'], ln=True, epi='swiglu', out_dst=('ws', WS['HB']), ldo=1792))
            ks.append(gen_gemm(f'ffn2_{L}_kernel', N=448, K=1792, BM=64, BN=64, BK=64, a_src=('ws', WS['HB']), w_srcs=['w2'], ln=False, epi='resid', out_dst=xout, res_src=('ws', WS['X1']), ldo=448))
        launches = []
        for L in range(2):
            launches += [f'qkv{L}_kernel', 'attn_kernel', f'wo{L}_kernel', 'ffn1_kernel', f'ffn2_{L}_kernel']
        out = sys.argv[2] if len(sys.argv) > 2 else 'interleave_layers__mha_block__glu_gated_swiglu__prompt.s'
        assemble(ks, launches, out)
    if which == 'full2':
        ks = []
        for L in range(2):
            xin = ('karg', 'A_x') if L == 0 else ('ws', WS['X2'])
            xout = ('ws', WS['X2']) if L == 0 else ('karg', 'out')
            ks.append(gen_gemm2(f'qkv{L}_kernel', N=1344, K=448, BM=128, BN=96, BK=64, NS=4, a_src=xin, w_srcs=['wqkv'], ln=True, epi='qkv'))
            if L == 0: ks.append(gen_attn2('attn_kernel'))
            ks.append(gen_gemm2(f'wo{L}_kernel', N=448, K=448, BM=64, BN=64, BK=64, NS=7, a_src=('ws', WS['OB']), w_srcs=['wo'], ln=False, epi='resid', out_dst=('ws', WS['X1']), res_src=xin, ldo=448))
            if L == 0:
                ks.append(gen_gemm2('ffn1_kernel', N=1792, K=448, BM=128, BN=256, BK=64, NS=3, a_src=('ws', WS['X1']), w_srcs=['w1','w3'], ln=True, epi='swiglu', out_dst=('ws', WS['HB']), ldo=1792))
            ks.append(gen_gemm2(f'ffn2_{L}_kernel', N=448, K=1792, BM=64, BN=64, BK=64, NS=8, a_src=('ws', WS['HB']), w_srcs=['w2'], ln=False, epi='resid', out_dst=xout, res_src=('ws', WS['X1']), ldo=448))
        for k in ks: print(k['name'], k['vgpr'], k['agpr'], k['lds'], k['nwg'], len(k['text'].split('\n')))
        launches = []
        for L in range(2):
            launches += [f'qkv{L}_kernel', 'attn_kernel', f'wo{L}_kernel', 'ffn1_kernel', f'ffn2_{L}_kernel']
        out = sys.argv[2] if len(sys.argv) > 2 else 'full2.s'
        assemble(ks, launches, out)
    if which == 'gemms2':
        ks = [
            gen_gemm2('wo0_kernel', N=448, K=448, BM=64, BN=64, BK=64, NS=7, a_src=('ws', WS['OB']), w_srcs=['wo'], ln=False, epi='resid', out_dst=('ws', WS['X1']), res_src=('karg','A_x'), ldo=448),
            gen_gemm2('ffn1_0_kernel', N=1792, K=448, BM=128, BN=256, BK=64, NS=3, a_src=('ws', WS['X1']), w_srcs=['w1','w3'], ln=True, epi='swiglu', out_dst=('ws', WS['HB']), ldo=1792),
            gen_gemm2('ffn2_0_kernel', N=448, K=1792, BM=64, BN=64, BK=64, NS=8, a_src=('ws', WS['HB']), w_srcs=['w2'], ln=False, epi='resid', out_dst=('ws', WS['X2']), res_src=('ws', WS['X1']), ldo=448),
        ]
        assemble(ks, [k['name'] for k in ks], 'test_gemms2.s')
        k1 = gen_gemm2('qkv0_kernel', N=1344, K=448, BM=128, BN=96, BK=64, NS=4, a_src=('karg', 'A_x'), w_srcs=['wqkv'], ln=True, epi='qkv')
        k2 = gen_attn2('attn_kernel')
        assemble([k1,k2], ['qkv0_kernel','attn_kernel'], 'test_qa2.s')
    if which == 'stamp':
        k1 = gen_gemm2('ffn1_kernel', stamps=True, N=1792, K=448, BM=128, BN=256, BK=64, NS=3, a_src=('ws', WS['X1']), w_srcs=['w1','w3'], ln=True, epi='swiglu', out_dst=('ws', WS['HB']), ldo=1792)
        assemble([k1], ['ffn1_kernel'], 'st_ffn1.s')
        k1 = gen_gemm2('qkv0_kernel', stamps=True, N=1344, K=448, BM=128, BN=96, BK=64, NS=4, a_src=('karg', 'A_x'), w_srcs=['wqkv'], ln=True, epi='qkv')
        assemble([k1], ['qkv0_kernel'], 'st_qkv.s')
    if which == 'qa':
        k1 = gen_gemm('qkv0_kernel', N=1344, K=448, BM=128, BN=96, BK=64, a_src=('karg', 'A_x'), w_srcs=['wqkv'], ln=True, epi='qkv')
        k2 = gen_attn2('attn_kernel')
        for k in (k1,k2): print(k['name'], k['vgpr'], k['agpr'], k['lds'], k['nwg'], len(k['text'].split('\n')))
        assemble([k1,k2], ['qkv0_kernel','attn_kernel'], 'test_qa.s')
    if which == 'qkv':
        k = gen_gemm('qkv0_kernel', N=1344, K=448, BM=128, BN=96, BK=64, a_src=('karg', 'A_x'), w_srcs=['wqkv'], ln=True, epi='qkv')
        print(k['vgpr'], k['agpr'], k['lds'], k['nwg'], len(k['text'].split('\n')))
        assemble([k], ['qkv0_kernel'], 'test_qkv.s')
```
